```python
import torch

def _softmax(x, axis=-1):
    return torch.softmax(x, dim=axis)
def _gelu(x):
    return torch.nn.functional.gelu(x, approximate="tanh")
def _silu(x):
    return torch.nn.functional.silu(x)
def _sigmoid(x):
    return torch.sigmoid(x)
def _layernorm(x, axis=-1, eps=1e-5):
    m = x.mean(dim=axis, keepdim=True)
    v = x.var(dim=axis, keepdim=True, unbiased=False)
    return (x - m) / torch.sqrt(v + eps)
def _scatter_add(tgt, idx, src, axis=0):
    return tgt.clone().index_add_(axis, idx, src)
def _segment_sum(src, seg, n):
    out = torch.zeros((n,) + src.shape[1:], dtype=src.dtype)
    return out.index_add_(0, seg, src)
def _pad(x, pw):
    flat = tuple(v for pair in reversed(pw) for v in pair)
    return torch.nn.functional.pad(x, flat)

kernel_name = 'gated_mix__linear_attn_block__dense_activation_gelu__prompt'

def setup_inputs():

    _w = (lambda a: (lambda t: t.to(torch.bfloat16) if t.is_floating_point() else t)(torch.as_tensor(a)))
    def _A_setup():
        B, S, D = 1, 2048, 640
        return {
            "x": _w((lambda *s: torch.randn(*s, dtype=torch.bfloat16) * 0.05)(B, S, D)),
            "wqkv": _w((lambda *s: torch.randn(*s, dtype=torch.bfloat16) * 0.8)(D, 3 * D)),
            "wo": _w((lambda *s: torch.randn(*s, dtype=torch.bfloat16) * 0.05)(D, D)),
        }
    _A_in = _A_setup()

    def _B_setup():
        B, S, D, F = 1, 2048, 640, 1728
        return {
            "x": _w((lambda *s: torch.randn(*s, dtype=torch.bfloat16) * 0.05)(B, S, D)),
            "w1": _w((lambda *s: torch.randn(*s, dtype=torch.bfloat16) * 3.2)(D, F) * (D ** -0.5)),
            "b1": _w((lambda *s: torch.randn(*s, dtype=torch.bfloat16) * 3.2)(F) * 0.01),
            "w2": _w((lambda *s: torch.randn(*s, dtype=torch.bfloat16) * 0.4)(F, D) * (F ** -0.5)),
            "b2": _w((lambda *s: torch.randn(*s, dtype=torch.bfloat16) * 0.8)(D) * 0.01),
        }
    _B_in = _B_setup()

    return {
        "A_x": _A_in["x"],
        "A_wqkv": _A_in["wqkv"],
        "A_wo": _A_in["wo"],
        "B_x": _B_in["x"],
        "B_w1": _B_in["w1"],
        "B_b1": _B_in["b1"],
        "B_w2": _B_in["w2"],
        "B_b2": _B_in["b2"],
        "gate_w": _w((lambda *s: torch.randn(*s, dtype=torch.bfloat16) * 0.05)(640) * 16.0),
    }

def reference(A_x, A_wqkv, A_wo, B_x, B_w1, B_b1, B_w2, B_b2, gate_w):
    def _A_ref(x, wqkv, wo):
        B, S, D = x.shape
        H = 32; Dh = D // H
        qkv = (lambda x, *d: x.permute(*d))((x @ wqkv).reshape(B, S, 3, H, Dh), 2, 0, 3, 1, 4)
        q, k, v = qkv[0], qkv[1], qkv[2]
        phi = lambda t: torch.where(t > 0, t + 1, torch.exp(t)) + 1e-6
        pq, pk = phi(q), phi(k)
        kv = torch.einsum("bhsd,bhse->bhde", pk, v)
        z = torch.einsum("bhsd->bhd", pk)
        num = torch.einsum("bhqd,bhde->bhqe", pq, kv)
        den = torch.einsum("bhqd,bhd->bhq", pq, z)[..., None] + 1e-6
        o = num / den
        return (lambda x, *d: x.permute(*d))(o, 0, 2, 1, 3).reshape(B, S, D) @ wo

    def _B_ref(x, w1, b1, w2, b2):
        h = torch.einsum("bsd,df->bsf", x, w1) + b1
        h = _gelu(h)
        return torch.einsum("bsf,fd->bsd", h, w2) + b2

    x = A_x
    g = _sigmoid((x * gate_w).sum(-1, keepdims=True))
    a = _A_ref(x, A_wqkv, A_wo)
    b = _B_ref(x, B_w1, B_b1, B_w2, B_b2)
    return g * a + (1 - g) * b
```

```python
import sys

NAME = "gated_mix__linear_attn_block__dense_activation_gelu__prompt"

WS_H = 0
WS_PQ = 0x6C0000
WS_PQS = 0x940000
WS_M = 0xBC0000
WS_OMG = 0xC88000
WS_KVP = 0xC8A000
KVP_BYTES = 11 * 8 * 20480

LOG2E = 0x3FB8AA3B
def f32(x):
    import struct
    return struct.unpack("<I", struct.pack("<f", x))[0]

class Asm:
    def __init__(self):
        self.lines = []
    def __call__(self, s):
        self.lines.append("    " + s)
    def label(self, l):
        self.lines.append(l + ":")
    def raw(self, s):
        self.lines.append(s)

def vr(a, n=1):
    return f"v{a}" if n == 1 else f"v[{a}:{a+n-1}]"
def sr(a, n=1):
    return f"s{a}" if n == 1 else f"s[{a}:{a+n-1}]"

def srd(A, d, lo, hi, nbytes):
    A(f"s_mov_b32 s{d}, s{lo}")
    A(f"s_and_b32 s{d+1}, s{hi}, 0xffff")
    A(f"s_mov_b32 s{d+2}, {nbytes}")
    A(f"s_mov_b32 s{d+3}, 0x00020000")

def kd(A, name, vgpr, sgpr=96):
    A.raw('.section .rodata,"a"')
    A.raw(".p2align 6")
    A.raw(f".amdhsa_kernel {name}")
    acc = (vgpr + 3) // 4 * 4
    A.raw(f"  .amdhsa_next_free_vgpr {vgpr}")
    A.raw(f"  .amdhsa_next_free_sgpr {sgpr}")
    A.raw(f"  .amdhsa_accum_offset {acc}")
    A.raw("  .amdhsa_group_segment_fixed_size 0")
    A.raw("  .amdhsa_kernarg_size 96")
    A.raw("  .amdhsa_user_sgpr_count 2")
    A.raw("  .amdhsa_user_sgpr_kernarg_segment_ptr 1")
    A.raw("  .amdhsa_system_sgpr_workgroup_id_x 1")
    A.raw(".end_amdhsa_kernel")
    A.raw(".text")

def khead(A, name):
    A.raw(f".globl {name}")
    A.raw(".p2align 8")
    A.raw(f".type {name},@function")
    A.label(name)

K1_SLOT = 45056
K1_WOFF = 24576
K1_LDS = 3 * K1_SLOT

def gen_k1(A):
    name = "k1_gemm_kernel"
    khead(A, name)
    S_RT, S_CT, S_W = 4, 5, 7
    SX, SW, SO, SB = 8, 12, 16, 20
    S_XOFF, S_WOFF, S_WSTR = 24, 25, 26
    S_MX = 27
    S_MW = 30
    S_RS = 33
    S_CB = 46
    S_T0, S_T1, S_T2 = 47, 48, 49
    S_TYPE = 50
    S_C1, S_C2, S_C3 = 51, 52, 53
    A("s_cmp_ge_u32 s2, 256")
    A("s_cbranch_scc1 K1_END")
    A("s_and_b32 s3, s2, 7")
    A("s_lshl_b32 s3, s3, 5")
    A(f"s_lshr_b32 s{S_T0}, s2, 3")
    A(f"s_add_u32 s3, s3, s{S_T0}")
    A("s_cmp_ge_u32 s3, 253")
    A("s_cbranch_scc1 K1_END")
    A("s_load_dwordx4 s[36:39], s[0:1], 0")
    A("s_load_dwordx4 s[40:43], s[0:1], 32")
    A("s_load_dwordx2 s[44:45], s[0:1], 88")
    A(f"s_mul_i32 s{S_CT}, s3, 373")
    A(f"s_lshr_b32 s{S_CT}, s{S_CT}, 12")
    A(f"s_mul_i32 s{S_T0}, s{S_CT}, 11")
    A(f"s_sub_u32 s{S_RT}, s3, s{S_T0}")
    A("v_lshrrev_b32 v1, 6, v0")
    A("v_and_b32 v2, 63, v0")
    A("s_nop 0")
    A(f"v_readfirstlane_b32 s{S_W}, v1")
    A("v_lshrrev_b32 v3, 4, v2")
    A("v_and_b32 v4, 15, v2")
    A("s_waitcnt lgkmcnt(0)")
    srd(A, SX, 36, 37, 2048 * 640 * 2)
    A(f"s_cmp_lt_u32 s{S_CT}, 8")
    A("s_cbranch_scc1 K1_SET_KV")
    A(f"s_cmp_lt_u32 s{S_CT}, 12")
    A("s_cbranch_scc1 K1_SET_Q")
    A(f"s_mov_b32 s{S_TYPE}, 2")
    srd(A, SW, 40, 41, 640 * 1728 * 2)
    A(f"s_mov_b32 s{S_RS}, 3456")
    A(f"s_sub_u32 s{S_T0}, s{S_CT}, 12")
    A(f"s_mul_i32 s{S_CB}, s{S_T0}, 320")
    A(f"s_add_u32 s{S_T1}, s44, {WS_H}")
    A(f"s_addc_u32 s{S_T2}, s45, 0")
    srd(A, SO, S_T1, S_T2, 2048 * 1728 * 2)
    A("s_branch K1_SET_DONE")
    A.label("K1_SET_Q")
    A(f"s_mov_b32 s{S_TYPE}, 1")
    srd(A, SW, 38, 39, 640 * 1920 * 2)
    A(f"s_mov_b32 s{S_RS}, 3840")
    A(f"s_sub_u32 s{S_T0}, s{S_CT}, 8")
    A(f"s_mul_i32 s{S_CB}, s{S_T0}, 320")
    A(f"s_add_u32 s{S_T1}, s44, {WS_PQ}")
    A(f"s_addc_u32 s{S_T2}, s45, 0")
    srd(A, SO, S_T1, S_T2, 2048 * 640 * 2)
    A("s_branch K1_SET_DONE")
    A.label("K1_SET_KV")
    A(f"s_mov_b32 s{S_TYPE}, 0")
    srd(A, SW, 38, 39, 640 * 1920 * 2)
    A(f"s_mov_b32 s{S_RS}, 3840")
    A(f"s_mul_i32 s{S_CB}, s{S_CT}, 160")
    A(f"s_add_u32 s{S_T1}, s44, {WS_KVP}")
    A(f"s_addc_u32 s{S_T2}, s45, 0")
    srd(A, SO, S_T1, S_T2, KVP_BYTES)
    A.label("K1_SET_DONE")
    srd(A, SB, 42, 43, 1728 * 2)
    A(f"s_lshl_b32 s{S_WSTR}, s{S_RS}, 6")
    A(f"s_mov_b32 s{S_XOFF}, 0")
    A(f"s_mov_b32 s{S_WOFF}, 0")
    A(f"s_mul_i32 s{S_MX}, s{S_W}, 3072")
    A(f"s_add_u32 s{S_MX+1}, s{S_MX}, 1024")
    A(f"s_add_u32 s{S_MX+2}, s{S_MX}, 2048")
    A(f"s_lshl_b32 s{S_MW}, s{S_W}, 10")
    A(f"s_add_u32 s{S_MW}, s{S_MW}, {K1_WOFF}")
    A(f"s_add_u32 s{S_MW+1}, s{S_MW}, 8192")
    A(f"s_add_u32 s{S_T0}, s{S_MW}, 16384")
    A(f"s_cmp_lt_u32 s{S_W}, 4")
    A(f"s_cselect_b32 s{S_MW+2}, s{S_T0}, s{S_MW+1}")
    VXO, VWO = 6, 9
    A(f"s_mul_i32 s{S_T0}, s{S_W}, 24")
    A(f"s_mul_i32 s{S_T1}, s{S_RT}, 192")
    A(f"s_add_u32 s{S_T0}, s{S_T0}, s{S_T1}")
    A("v_lshrrev_b32 v1, 3, v2")
    A("v_and_b32 v5, 7, v2")
    A("v_xor_b32 v5, v5, v1")
    A("v_lshlrev_b32 v5, 4, v5")
    A(f"v_add_u32 v1, s{S_T0}, v1")
    A(f"s_movk_i32 s{S_T1}, 1280")
    A(f"v_mul_lo_u32 v1, v1, s{S_T1}")
    A(f"v_add_u32 v{VXO}, v1, v5")
    A(f"v_add_u32 v{VXO+1}, {8*1280}, v{VXO}")
    A(f"v_add_u32 v{VXO+2}, {16*1280}, v{VXO}")
    for i in range(3):
        if i == 0:
            A(f"s_mov_b32 s{S_T0}, s{S_W}")
        elif i == 1:
            A(f"s_add_u32 s{S_T0}, s{S_W}, 8")
        else:
            A(f"s_add_u32 s{S_T0}, s{S_W}, 16")
            A(f"s_add_u32 s{S_T1}, s{S_W}, 8")
            A(f"s_cmp_lt_u32 s{S_W}, 4")
            A(f"s_cselect_b32 s{S_T0}, s{S_T0}, s{S_T1}")
        A(f"s_lshl_b32 s{S_T0}, s{S_T0}, 6")
        A(f"v_add_u32 v1, s{S_T0}, v2")
        A(f"s_movk_i32 s{S_T1}, 3277")
        A(f"v_mul_lo_u32 v5, v1, s{S_T1}")
        A("v_lshrrev_b32 v5, 16, v5")
        A("v_mul_u32_u24 v12, 20, v5")
        A("v_sub_u32 v12, v1, v12")
        A("v_lshrrev_b32 v13, 3, v5")
        A("v_and_b32 v13, 1, v13")
        A("v_lshlrev_b32 v13, 1, v13")
        A("v_xor_b32 v12, v12, v13")
        A(f"v_mul_lo_u32 v5, v5, s{S_RS}")
        A("v_lshlrev_b32 v13, 4, v12")
        A(f"v_add_u32 v5, v5, v13")
        A(f"v_add_u32 v5, s{S_CB}, v5")
        A(f"s_cmp_lg_u32 s{S_TYPE}, 0")
        A(f"s_cbranch_scc1 K1_WOFF_DONE{i}")
        A("v_cmp_le_u32 vcc, 10, v12")
        A("v_mov_b32 v13, 0")
        A("v_mov_b32 v14, 10")
        A("v_cndmask_b32 v13, v13, v14, vcc")
        A("v_sub_u32 v14, v12, v13")
        A("v_lshlrev_b32 v13, 3, v13")
        A("v_sub_u32 v5, v5, v13")
        A("v_cmp_le_u32 vcc, 5, v14")
        A("v_mov_b32 v13, 1280")
        A("v_mov_b32 v14, 2480")
        A("v_cndmask_b32 v13, v13, v14, vcc")
        A("v_add_u32 v5, v5, v13")
        A.label(f"K1_WOFF_DONE{i}")
        A(f"v_mov_b32 v{VWO+i}, v5")
    VB = 12
    A(f"s_and_b32 s{S_T0}, s{S_W}, 3")
    A(f"s_lshr_b32 s{S_T1}, s{S_W}, 2")
    A(f"s_mul_i32 s{S_T2}, s{S_T0}, 48")
    A(f"v_add_u32 v1, s{S_T2}, v4")
    A("v_lshlrev_b32 v1, 7, v1")
    A("v_and_b32 v5, 7, v2")
    A("v_xor_b32 v24, v3, v5")
    A("v_lshlrev_b32 v24, 4, v24")
    A(f"v_add_u32 v{VB}, v1, v24")
    A(f"v_xor_b32 v{VB+1}, 64, v{VB}")
    A("v_lshlrev_b32 v1, 3, v3")
    A("v_lshrrev_b32 v5, 2, v4")
    A("v_add_u32 v1, v1, v5")
    A("v_mul_u32_u24 v1, 320, v1")
    A("v_and_b32 v5, 3, v2")
    A("v_lshlrev_b32 v5, 3, v5")
    A("v_add_u32 v1, v1, v5")
    A(f"s_mul_i32 s{S_T2}, s{S_T1}, 160")
    A(f"v_add_u32 v1, s{S_T2}, v1")
    A("v_and_b32 v5, 1, v3")
    A("v_lshlrev_b32 v5, 5, v5")
    A("v_add_u32 v24, v1, v5")
    A("v_sub_u32 v25, v1, v5")
    A(f"s_cmp_eq_u32 s{S_T1}, 0")
    A("s_cbranch_scc1 K1_NH0")
    A(f"v_mov_b32 v{VB+2}, v25")
    A(f"v_mov_b32 v{VB+3}, v24")
    A("s_branch K1_NHD")
    A.label("K1_NH0")
    A(f"v_mov_b32 v{VB+2}, v24")
    A(f"v_mov_b32 v{VB+3}, v25")
    A.label("K1_NHD")
    for s in (1, 2):
        for i in range(4):
            A(f"v_add_u32 v{VB+4*s+i}, {s*K1_SLOT}, v{VB+i}")
    VB1 = 148
    A(f"s_cmp_lg_u32 s{S_TYPE}, 2")
    A("s_cbranch_scc1 K1_NOB1")
    A(f"s_mul_i32 s{S_T2}, s{S_T1}, 160")
    A(f"s_add_u32 s{S_T2}, s{S_T2}, s{S_CB}")
    A("v_lshlrev_b32 v1, 3, v3")
    A(f"v_add_u32 v1, s{S_T2}, v1")
    for j in range(5):
        A(f"buffer_load_dwordx2 v[{VB1+2*j}:{VB1+2*j+1}], v1, s[{SB}:{SB+3}], 0 offen offset:{32*j}")
    A.label("K1_NOB1")

    FR = [24, 56]
    ACC = 88
    def acc(mt, j):
        return ACC + 4 * (mt * 5 + j)
    for i in range(60):
        A(f"v_mov_b32 v{ACC+i}, 0")

    def issue_stage(slot):
        base = slot * K1_SLOT
        for i in range(3):
            A(f"s_add_u32 m0, s{S_MX+i}, {base}")
            A("s_nop 0")
            A(f"buffer_load_dwordx4 v{VXO+i}, s[{SX}:{SX+3}], s{S_XOFF} offen lds")
        for i in range(3):
            A(f"s_add_u32 m0, s{S_MW+i}, {base}")
            A("s_nop 0")
            A(f"buffer_load_dwordx4 v{VWO+i}, s[{SW}:{SW+3}], s{S_WOFF} offen lds")
        A(f"s_add_u32 s{S_XOFF}, s{S_XOFF}, 128")
        A(f"s_add_u32 s{S_WOFF}, s{S_WOFF}, s{S_WSTR}")

    def frag_reads(t):
        st, ks = t >> 1, t & 1
        slot = st % 3
        fs = FR[t & 1]
        out = []
        for mt in range(3):
            out.append(f"ds_read_b128 v[{fs+4*mt}:{fs+4*mt+3}], v{VB+4*slot+ks} offset:{mt*2048}")
        for j in range(5):
            for hh in range(2):
                off = K1_WOFF + (32 * ks + 4 * hh) * 320 + 32 * j
                r = fs + 12 + 4 * j + 2 * hh
                out.append(f"ds_read_b64_tr_b16 v[{r}:{r+1}], v{VB+4*slot+2+(j&1)} offset:{off}")
        return out

    def mainloop(swapped, tag):
        for s in range(3):
            issue_stage(s)
        A("s_waitcnt vmcnt(12)")
        A("s_barrier")
        for r in frag_reads(0):
            A(r)
        for t in range(20):
            A("s_waitcnt lgkmcnt(0)")
            if t & 1 and t < 19:
                s = (t - 1) // 2
                if s + 2 <= 9:
                    A("s_waitcnt vmcnt(6)")
                else:
                    A("s_waitcnt vmcnt(0)")
                A("s_barrier")
                if s + 3 <= 9:
                    issue_stage(s % 3)
            rd = frag_reads(t + 1) if t < 19 else []
            fs = FR[t & 1]
            mf = []
            for j in range(5):
                for mt in range(3):
                    x = f"v[{fs+4*mt}:{fs+4*mt+3}]"
                    w = f"v[{fs+12+4*j}:{fs+12+4*j+3}]"
                    a = f"v[{acc(mt,j)}:{acc(mt,j)+3}]"
                    if swapped:
                        mf.append(f"v_mfma_f32_16x16x32_bf16 {a}, {w}, {x}, {a}")
                    else:
                        mf.append(f"v_mfma_f32_16x16x32_bf16 {a}, {x}, {w}, {a}")
            k = 0
            for i, m in enumerate(mf):
                A(m)
                if k < len(rd):
                    A(rd[k]); k += 1
            while k < len(rd):
                A(rd[k]); k += 1
        A("s_nop 7")
        A("s_nop 7")

    A(f"s_cmp_eq_u32 s{S_TYPE}, 0")
    A("s_cbranch_scc1 K1_KV")
    mainloop(True, "qh")
    A(f"s_and_b32 s{S_T0}, s{S_W}, 3")
    A(f"s_lshr_b32 s{S_T1}, s{S_W}, 2")
    A(f"s_mul_i32 s{S_T2}, s{S_T0}, 48")
    A(f"s_mul_i32 s{S_C1}, s{S_RT}, 192")
    A(f"s_add_u32 s{S_T2}, s{S_T2}, s{S_C1}")
    A(f"v_add_u32 v1, s{S_T2}, v4")
    A(f"s_mul_i32 s{S_C1}, s{S_T1}, 160")
    A(f"s_add_u32 s{S_C1}, s{S_C1}, s{S_CB}")
    A("v_lshlrev_b32 v5, 3, v3")
    A(f"v_add_u32 v5, s{S_C1}, v5")
    A(f"s_cmp_eq_u32 s{S_TYPE}, 2")
    A("s_cbranch_scc1 K1_EPI_H")
    A(f"s_movk_i32 s{S_T0}, 1280")
    A(f"v_mul_lo_u32 v1, v1, s{S_T0}")
    A("v_add_u32 v1, v1, v5")
    A(f"s_mov_b32 s{S_C1}, {LOG2E}")
    A(f"s_mov_b32 s{S_C2}, {f32(1e-6)}")
    T = 24
    for mt in range(3):
        for j in range(5):
            a = acc(mt, j)
            for r in range(4):
                A(f"v_min_f32 v{T+r}, 0, v{a+r}")
            for r in range(4):
                A(f"v_mul_f32 v{T+r}, s{S_C1}, v{T+r}")
            for r in range(4):
                A(f"v_exp_f32 v{T+r}, v{T+r}")
            for r in range(4):
                A(f"v_max_f32 v{T+4+r}, 0, v{a+r}")
            for r in range(4):
                A(f"v_add_f32 v{T+r}, v{T+r}, v{T+4+r}")
            for r in range(4):
                A(f"v_add_f32 v{T+r}, s{S_C2}, v{T+r}")
            o = 40 + 2 * ((mt * 5 + j) & 3)
            A(f"v_cvt_pk_bf16_f32 v{o}, v{T}, v{T+1}")
            A(f"v_cvt_pk_bf16_f32 v{o+1}, v{T+2}, v{T+3}")
            if mt == 0:
                A(f"buffer_store_dwordx2 v[{o}:{o+1}], v1, s[{SO}:{SO+3}], 0 offen offset:{32*j}")
            else:
                A(f"buffer_store_dwordx2 v[{o}:{o+1}], v{1+mt+4}, s[{SO}:{SO+3}], 0 offen offset:{32*j}")
        if mt == 0:
            A(f"v_add_u32 v6, {16*1280}, v1")
            A(f"v_add_u32 v7, {32*1280}, v1")
    A("s_branch K1_END")
    A.label("K1_EPI_H")
    A(f"s_movk_i32 s{S_T0}, 3456")
    A(f"v_mul_lo_u32 v1, v1, s{S_T0}")
    A("v_add_u32 v1, v1, v5")
    A(f"v_add_u32 v6, {16*3456}, v1")
    A(f"v_add_u32 v7, {32*3456}, v1")
    c1 = -2.0 * 0.7978845608028654 * 1.4426950408889634
    A(f"s_mov_b32 s{S_C1}, {f32(c1)}")
    A(f"s_mov_b32 s{S_C2}, {f32(c1 * 0.044715)}")
    A(f"v_mov_b32 v8, s{S_C1}")
    A(f"s_mul_i32 s{S_T2}, s{S_T1}, 160")
    A(f"s_add_u32 s{S_T2}, s{S_T2}, s{S_CB}")
    for j in range(5):
        A(f"v_lshlrev_b32 v{60+4*j}, 16, v{VB1+2*j}")
        A(f"v_and_b32 v{60+4*j+1}, 0xffff0000, v{VB1+2*j}")
        A(f"v_lshlrev_b32 v{60+4*j+2}, 16, v{VB1+2*j+1}")
        A(f"v_and_b32 v{60+4*j+3}, 0xffff0000, v{VB1+2*j+1}")
    for j in range(5):
        A(f"s_add_u32 s{S_T0}, s{S_T2}, {32*j}")
        A(f"s_cmp_ge_u32 s{S_T0}, 3456")
        A("s_cbranch_scc1 K1_END")
        for mt in range(3):
            a = acc(mt, j)
            for r in range(4):
                A(f"v_add_f32 v{a+r}, v{a+r}, v{60+4*j+r}")
            for r in range(4):
                A(f"v_mul_f32 v{T+r}, v{a+r}, v{a+r}")
            for r in range(4):
                A(f"v_fma_f32 v{T+r}, v{T+r}, s{S_C2}, v8")
            for r in range(4):
                A(f"v_mul_f32 v{T+r}, v{T+r}, v{a+r}")
            for r in range(4):
                A(f"v_exp_f32 v{T+r}, v{T+r}")
            for r in range(4):
                A(f"v_add_f32 v{T+r}, 1.0, v{T+r}")
            for r in range(4):
                A(f"v_rcp_f32 v{T+r}, v{T+r}")
            for r in range(4):
                A(f"v_mul_f32 v{T+r}, v{T+r}, v{a+r}")
            o = 40 + 2 * ((mt + 3 * j) & 3)
            A(f"v_cvt_pk_bf16_f32 v{o}, v{T}, v{T+1}")
            A(f"v_cvt_pk_bf16_f32 v{o+1}, v{T+2}, v{T+3}")
            ar = 1 if mt == 0 else 5 + mt
            A(f"buffer_store_dwordx2 v[{o}:{o+1}], v{ar}, s[{SO}:{SO+3}], 0 offen offset:{32*j}")
    A("s_branch K1_END")

    A.label("K1_KV")
    mainloop(False, "kv")
    A(f"s_and_b32 s{S_T0}, s{S_W}, 3")
    A(f"s_mul_i32 s{S_T2}, s{S_T0}, 48")
    A(f"s_mul_i32 s{S_C1}, s{S_RT}, 192")
    A(f"s_add_u32 s{S_T2}, s{S_T2}, s{S_C1}")
    A(f"s_mov_b32 s{S_C1}, {LOG2E}")
    A(f"s_mov_b32 s{S_C2}, {f32(1e-6)}")
    KV = 24
    for i in range(40):
        A(f"v_mov_b32 v{KV+i}, 0")
    A("v_mov_b32 v64, 0x3f803f80")
    A("v_mov_b32 v65, 0x3f803f80")
    A("v_cmp_gt_u32 s[54:55], 8, v4")
    PK = 66
    T = 76
    pairs = [(0, 2), (0, 3), (1, 2), (1, 3), (1, 4), (2, 3), (2, 4)]
    for mt in range(3):
        A(f"s_add_u32 s{S_T0}, s{S_T2}, {16*mt}")
        A(f"s_cmp_ge_u32 s{S_T0}, 2048")
        A("s_cbranch_scc1 K1_KV_RED")
        for j in range(5):
            a = acc(mt, j)
            if j <= 2:
                for r in range(4):
                    A(f"v_min_f32 v{T+r}, 0, v{a+r}")
                for r in range(4):
                    A(f"v_mul_f32 v{T+r}, s{S_C1}, v{T+r}")
                for r in range(4):
                    A(f"v_exp_f32 v{T+r}, v{T+r}")
                for r in range(4):
                    A(f"v_max_f32 v{T+4+r}, 0, v{a+r}")
                for r in range(4):
                    A(f"v_add_f32 v{T+r}, v{T+r}, v{T+4+r}")
                for r in range(4):
                    A(f"v_add_f32 v{T+r}, s{S_C2}, v{T+r}")
                if j == 2:
                    for r in range(4):
                        A(f"v_cndmask_b32 v{T+r}, v{a+r}, v{T+r}, s[54:55]")
                src = T
            else:
                src = a
            A(f"v_cvt_pk_bf16_f32 v{PK+2*j}, v{src}, v{src+1}")
            A(f"v_cvt_pk_bf16_f32 v{PK+2*j+1}, v{src+2}, v{src+3}")
        A("s_nop 1")
        for pi, (a, b) in enumerate(pairs):
            d = f"v[{KV+4*pi}:{KV+4*pi+3}]"
            A(f"v_mfma_f32_16x16x16_bf16 {d}, v[{PK+2*a}:{PK+2*a+1}], v[{PK+2*b}:{PK+2*b+1}], {d}")
        for a in range(3):
            d = f"v[{KV+4*(7+a)}:{KV+4*(7+a)+3}]"
            A(f"v_mfma_f32_16x16x16_bf16 {d}, v[{PK+2*a}:{PK+2*a+1}], v[64:65], {d}")
        A("s_nop 7")
    A.label("K1_KV_RED")
    A("s_nop 7")
    A("s_nop 7")
    A("s_barrier")
    A(f"s_mul_i32 s{S_T0}, s{S_W}, 10240")
    A("v_lshlrev_b32 v1, 4, v2")
    A(f"v_add_u32 v5, s{S_T0}, v1")
    for i in range(10):
        A(f"ds_write_b128 v5, v[{KV+4*i}:{KV+4*i+3}] offset:{1024*i}")
    A("s_waitcnt lgkmcnt(0)")
    A("s_barrier")
    A(f"s_mul_i32 s{S_C1}, s{S_RT}, 8")
    A(f"s_add_u32 s{S_C1}, s{S_C1}, s{S_CT}")
    A(f"s_mul_i32 s{S_C1}, s{S_C1}, 20480")
    for n in range(3):
        if n == 2:
            A(f"s_cmp_ge_u32 s{S_W}, 4")
            A("s_cbranch_scc1 K1_END")
        A(f"s_add_u32 s{S_T0}, s{S_W}, {8*n}")
        A(f"s_cmp_ge_u32 s{S_T0}, 10")
        A(f"s_cselect_b32 s{S_T1}, 1, 0")
        A(f"s_mul_i32 s{S_T2}, s{S_T1}, 10")
        A(f"s_sub_u32 s{S_T2}, s{S_T0}, s{S_T2}")
        A(f"s_mul_i32 s{S_T1}, s{S_T1}, 40960")
        A(f"s_lshl_b32 s{S_T2}, s{S_T2}, 10")
        A(f"s_add_u32 s{S_T1}, s{S_T1}, s{S_T2}")
        A(f"v_add_u32 v5, s{S_T1}, v1")
        for m in range(4):
            A(f"ds_read_b128 v[{80+4*m}:{80+4*m+3}], v5 offset:{10240*m}")
        A(f"s_lshl_b32 s{S_T0}, s{S_T0}, 10")
        A(f"s_add_u32 s{S_T0}, s{S_T0}, s{S_C1}")
        A(f"v_add_u32 v6, s{S_T0}, v1")
        A("s_waitcnt lgkmcnt(0)")
        for r in range(4):
            A(f"v_add_f32 v{80+r}, v{80+r}, v{84+r}")
            A(f"v_add_f32 v{88+r}, v{88+r}, v{92+r}")
        for r in range(4):
            A(f"v_add_f32 v{80+r}, v{80+r}, v{88+r}")
        A(f"buffer_store_dwordx4 v[80:83], v6, s[{SO}:{SO+3}], 0 offen")
        A("s_nop 1")
    A.label("K1_END")
    A("s_endpgm")
    kd(A, name, 160)

K2_LDS = 8192
def gen_k2(A):
    name = "k2_small_kernel"
    khead(A, name)
    SKV, SWO, SPQ, SPS, SXX, SGW, SM, SOM = 8, 12, 16, 20, 24, 28, 32, 36
    A("s_cmp_ge_u32 s2, 256")
    A("s_cbranch_scc1 K2_END")
    A("s_load_dwordx2 s[40:41], s[0:1], 0")
    A("s_load_dwordx2 s[42:43], s[0:1], 16")
    A("s_load_dwordx2 s[44:45], s[0:1], 64")
    A("s_load_dwordx2 s[46:47], s[0:1], 88")
    A("s_waitcnt lgkmcnt(0)")
    srd(A, SXX, 40, 41, 2048 * 640 * 2)
    srd(A, SWO, 42, 43, 640 * 640 * 2)
    srd(A, SGW, 44, 45, 1280)
    def wssrd(d, off, n):
        A(f"s_add_u32 s48, s46, {off}")
        A("s_addc_u32 s49, s47, 0")
        srd(A, d, 48, 49, n)
    wssrd(SKV, WS_KVP, KVP_BYTES)
    wssrd(SPQ, WS_PQ, 2048 * 640 * 2)
    wssrd(SPS, WS_PQS, 2048 * 640 * 2)
    wssrd(SM, WS_M, 640 * 640 * 2)
    wssrd(SOM, WS_OMG, 8192)
    A("s_lshr_b32 s4, s2, 3")
    A("s_and_b32 s5, s2, 7")
    A("v_mul_u32_u24 v1, 6554, v0")
    A("v_lshrrev_b32 v1, 16, v1")
    A("v_mul_u32_u24 v2, 10, v1")
    A("v_sub_u32 v2, v0, v2")
    A("s_mul_i32 s6, s4, 25600")
    A("s_mul_i32 s7, s5, 160")
    A("s_add_u32 s6, s6, s7")
    A("v_lshlrev_b32 v3, 4, v2")
    A("v_add_u32 v3, s6, v3")
    for e in range(20):
        if e * 1280 <= 4095:
            A(f"buffer_load_dwordx4 v[{100+4*e}:{103+4*e}], v3, s[{SWO}:{SWO+3}], 0 offen offset:{e*1280}")
        else:
            A(f"s_mov_b32 s50, {e*1280}")
            A(f"buffer_load_dwordx4 v[{100+4*e}:{103+4*e}], v3, s[{SWO}:{SWO+3}], s50 offen")
    A("v_lshrrev_b32 v4, 5, v0")
    A("v_and_b32 v5, 31, v0")
    A("s_lshl_b32 s6, s2, 3")
    A("v_add_u32 v4, s6, v4")
    A("v_mul_u32_u24 v6, 1280, v4")
    A("v_mul_u32_u24 v7, 40, v5")
    A("v_add_u32 v6, v6, v7")
    for i in range(5):
        A(f"buffer_load_dwordx2 v[{20+2*i}:{21+2*i}], v6, s[{SPQ}:{SPQ+3}], 0 offen offset:{8*i}")
    for i in range(5):
        A(f"buffer_load_dwordx2 v[{30+2*i}:{31+2*i}], v6, s[{SXX}:{SXX+3}], 0 offen offset:{8*i}")
    for i in range(5):
        A(f"buffer_load_dwordx2 v[{40+2*i}:{41+2*i}], v7, s[{SGW}:{SGW+3}], 0 offen offset:{8*i}")
    def zaddr(vc, vout, t1, t2, t3):
        A(f"v_mul_u32_u24 {t1}, 3277, {vc}")
        A(f"v_lshrrev_b32 {t1}, 16, {t1}")
        A(f"v_mul_u32_u24 {t2}, 20, {t1}")
        A(f"v_sub_u32 {t2}, {vc}, {t2}")
        A(f"v_and_b32 {t3}, 1, {t1}")
        A(f"v_mul_u32_u24 {t3}, 20, {t3}")
        A(f"v_add_u32 {t2}, {t2}, {t3}")
        A(f"v_lshrrev_b32 {t3}, 2, {t1}")
        A(f"v_mul_u32_u24 {vout}, 20480, {t3}")
        A(f"v_lshrrev_b32 {t3}, 1, {t1}")
        A(f"v_and_b32 {t3}, 1, {t3}")
        A(f"v_mul_u32_u24 {t3}, 10240, {t3}")
        A(f"v_add_u32 {vout}, {vout}, {t3}")
        A(f"v_lshrrev_b32 {t3}, 4, {t2}")
        A(f"v_add_u32 {t3}, 7, {t3}")
        A(f"v_lshlrev_b32 {t3}, 10, {t3}")
        A(f"v_add_u32 {vout}, {vout}, {t3}")
        A(f"v_and_b32 {t3}, 15, {t2}")
        A(f"v_lshrrev_b32 {t1}, 2, {t3}")
        A(f"v_lshlrev_b32 {t1}, 8, {t1}")
        A(f"v_add_u32 {vout}, {vout}, {t1}")
        A(f"v_and_b32 {t3}, 3, {t3}")
        A(f"v_lshlrev_b32 {t3}, 2, {t3}")
        A(f"v_add_u32 {vout}, {vout}, {t3}")
    for n in range(3):
        A(f"v_add_u32 v8, {256*n}, v0")
        zaddr("v8", f"v{9+n}", "v12", "v13", "v14")
    A("v_cmp_gt_u32 vcc, 128, v0")
    A("v_mov_b32 v12, 0x7fffffff")
    A("s_nop 1")
    A("v_cndmask_b32 v11, v12, v11, vcc")
    for n in range(3):
        for rt in range(11):
            A(f"s_mov_b32 s50, {rt*8*20480}")
            A(f"buffer_load_dword v{50+11*n+rt}, v{9+n}, s[{SKV}:{SKV+3}], s50 offen")
    A("s_lshr_b32 s6, s4, 2")
    A("s_mul_i32 s6, s6, 20480")
    A("s_lshr_b32 s7, s4, 1")
    A("s_and_b32 s7, s7, 1")
    A("s_mul_i32 s7, s7, 10240")
    A("s_add_u32 s6, s6, s7")
    A("s_and_b32 s7, s4, 1")
    A("s_mul_i32 s7, s7, 20")
    for n in range(2):
        A(f"v_add_u32 v8, {256*n}, v0")
        A("v_mul_u32_u24 v12, 3277, v8")
        A("v_lshrrev_b32 v12, 16, v12")
        A("v_mul_u32_u24 v13, 20, v12")
        A("v_sub_u32 v13, v8, v13")
        A("v_add_u32 v12, s7, v12")
        A("v_add_u32 v13, s7, v13")
        A("v_add_u32 v13, 40, v13")
        A("v_lshrrev_b32 v14, 4, v12")
        A("v_lshrrev_b32 v15, 4, v13")
        A("v_lshlrev_b32 v16, 1, v14")
        A("v_add_u32 v16, v16, v15")
        A("v_subrev_u32 v16, 2, v16")
        A("v_lshlrev_b32 v16, 10, v16")
        A("v_and_b32 v14, 15, v12")
        A("v_and_b32 v15, 15, v13")
        A("v_lshrrev_b32 v12, 2, v14")
        A("v_lshlrev_b32 v12, 4, v12")
        A("v_add_u32 v12, v12, v15")
        A("v_lshlrev_b32 v12, 4, v12")
        A("v_add_u32 v16, v16, v12")
        A("v_and_b32 v14, 3, v14")
        A("v_lshlrev_b32 v14, 2, v14")
        A("v_add_u32 v16, v16, v14")
        A(f"v_add_u32 v{17+n}, s6, v16")
    A("v_cmp_gt_u32 vcc, 144, v0")
    A("v_mov_b32 v12, 0x7fffffff")
    A("s_nop 1")
    A("v_cndmask_b32 v18, v12, v18, vcc")
    for n in range(2):
        for rt in range(11):
            A(f"s_mov_b32 s50, {rt*8*20480}")
            A(f"buffer_load_dword v{180+11*n+rt}, v{17+n}, s[{SKV}:{SKV+3}], s50 offen")
    A("s_waitcnt vmcnt(22)")
    for n in range(3):
        for rt in range(1, 11):
            A(f"v_add_f32 v{50+11*n}, v{50+11*n}, v{50+11*n+rt}")
    A("v_cvt_pk_bf16_f32 v12, v50, v61")
    A("v_cvt_pk_bf16_f32 v13, v72, v72")
    A("v_lshlrev_b32 v14, 16, v12")
    A("v_and_b32 v15, 0xffff0000, v12")
    A("v_lshlrev_b32 v16, 16, v13")
    A("v_lshlrev_b32 v8, 2, v0")
    A("ds_write_b32 v8, v14")
    A("ds_write_b32 v8, v15 offset:1024")
    A("ds_write_b32 v8, v16 offset:2048")
    A("s_waitcnt vmcnt(0)")
    for n in range(2):
        for rt in range(1, 11):
            A(f"v_add_f32 v{180+11*n}, v{180+11*n}, v{180+11*n+rt}")
    A("v_cvt_pk_bf16_f32 v12, v180, v191")
    A("v_lshlrev_b32 v14, 16, v12")
    A("v_and_b32 v15, 0xffff0000, v12")
    A("ds_write_b32 v8, v14 offset:4096")
    A("ds_write_b32 v8, v15 offset:5120")
    A("v_mov_b32 v84, 0")
    for i in range(10):
        A(f"v_lshlrev_b32 v12, 16, v{30+i}")
        A(f"v_lshlrev_b32 v13, 16, v{40+i}")
        A("v_fmac_f32 v84, v12, v13")
        A(f"v_and_b32 v12, 0xffff0000, v{30+i}")
        A(f"v_and_b32 v13, 0xffff0000, v{40+i}")
        A("v_fmac_f32 v84, v12, v13")
    for m in (1, 2, 4, 8, 16):
        A(f"ds_swizzle_b32 v12, v84 offset:{(m << 10) | 0x1F}")
        A("s_waitcnt lgkmcnt(0)")
        A("v_add_f32 v84, v84, v12")
    A("s_barrier")
    A("v_cvt_pk_bf16_f32 v12, v84, v84")
    A("v_lshlrev_b32 v12, 16, v12")
    A(f"s_mov_b32 s50, {f32(-1.4426950408889634)}")
    A("v_mul_f32 v12, s50, v12")
    A("v_exp_f32 v12, v12")
    A("s_nop 0")
    A("v_add_f32 v12, 1.0, v12")
    A("v_rcp_f32 v85, v12")
    A("v_mul_u32_u24 v13, 80, v5")
    for i in range(5):
        A(f"ds_read_b128 v[{60+4*i}:{63+4*i}], v13 offset:{16*i}")
    for i in range(10):
        A(f"v_lshlrev_b32 v{204+2*i}, 16, v{20+i}")
        A(f"v_and_b32 v{205+2*i}, 0xffff0000, v{20+i}")
    A("s_waitcnt lgkmcnt(0)")
    A("v_mov_b32 v86, 0")
    for i in range(20):
        A(f"v_fmac_f32 v86, v{204+i}, v{60+i}")
    A(f"s_mov_b32 s51, {f32(1e-6)}")
    A("v_add_f32 v86, s51, v86")
    A("v_rcp_f32 v86, v86")
    A("s_nop 0")
    A("v_mul_f32 v86, v86, v85")
    for i in range(20):
        A(f"v_mul_f32 v{204+i}, v{204+i}, v86")
    for i in range(10):
        A(f"v_cvt_pk_bf16_f32 v{20+i}, v{204+2*i}, v{205+2*i}")
    for i in range(5):
        A(f"buffer_store_dwordx2 v[{20+2*i}:{21+2*i}], v6, s[{SPS}:{SPS+3}], 0 offen offset:{8*i}")
    A("v_sub_f32 v12, 1.0, v85")
    A("v_lshlrev_b32 v13, 2, v4")
    A("v_cmp_eq_u32 vcc, 0, v5")
    A("v_mov_b32 v14, 0x7fffffff")
    A("s_nop 1")
    A("v_cndmask_b32 v13, v14, v13, vcc")
    A(f"buffer_store_dword v12, v13, s[{SOM}:{SOM+3}], 0 offen")
    A("v_mul_u32_u24 v13, 80, v1")
    for i in range(5):
        A(f"ds_read_b128 v[{60+4*i}:{63+4*i}], v13 offset:{4096+16*i}")
    for c in range(8):
        A(f"v_mov_b32 v{204+c}, 0")
    A("s_waitcnt lgkmcnt(0)")
    for e in range(20):
        for c2 in range(4):
            A(f"v_lshlrev_b32 v12, 16, v{100+4*e+c2}")
            A(f"v_and_b32 v14, 0xffff0000, v{100+4*e+c2}")
            A(f"v_fmac_f32 v{204+2*c2}, v{60+e}, v12")
            A(f"v_fmac_f32 v{205+2*c2}, v{60+e}, v14")
    for c2 in range(4):
        A(f"v_cvt_pk_bf16_f32 v{216+c2}, v{204+2*c2}, v{205+2*c2}")
    A("s_mul_i32 s6, s4, 25600")
    A("s_mul_i32 s7, s5, 160")
    A("s_add_u32 s6, s6, s7")
    A("v_mul_u32_u24 v13, 1280, v1")
    A("v_lshlrev_b32 v12, 4, v2")
    A("v_add_u32 v13, v13, v12")
    A("v_add_u32 v13, s6, v13")
    A("v_cmp_gt_u32 vcc, 200, v0")
    A("v_mov_b32 v14, 0x7fffffff")
    A("s_nop 1")
    A("v_cndmask_b32 v13, v14, v13, vcc")
    A(f"buffer_store_dwordx4 v[216:219], v13, s[{SM}:{SM+3}], 0 offen")
    A.label("K2_END")
    A("s_endpgm")
    kd(A, name, 224)

K3_SLOT = 9216
K3_LDS = 4 * 4 * K3_SLOT
def gen_k3(A):
    name = NAME + "_kernel"
    khead(A, name)
    SA, SB_, SO, SB2, SOM = 8, 12, 16, 20, 24
    S_RT, S_CT, S_W = 4, 5, 7
    S_AOFF, S_BOFF, S_LB = 28, 29, 30
    S_T0, S_T1, S_T2 = 31, 32, 33
    A("s_cmp_ge_u32 s2, 256")
    A("s_cbranch_scc1 K3_END")
    A("s_load_dwordx4 s[36:39], s[0:1], 48")
    A("s_load_dwordx2 s[40:41], s[0:1], 72")
    A("s_load_dwordx2 s[42:43], s[0:1], 88")
    A("s_and_b32 s3, s2, 7")
    A("s_lshl_b32 s3, s3, 2")
    A(f"s_lshr_b32 s{S_T0}, s2, 3")
    A(f"s_and_b32 s{S_T1}, s{S_T0}, 3")
    A(f"s_add_u32 s{S_RT}, s3, s{S_T1}")
    A(f"s_lshr_b32 s{S_CT}, s2, 5")
    A("v_lshrrev_b32 v1, 6, v0")
    A("v_and_b32 v2, 63, v0")
    A("s_nop 0")
    A(f"v_readfirstlane_b32 s{S_W}, v1")
    A("v_lshrrev_b32 v3, 4, v2")
    A("v_and_b32 v4, 15, v2")
    A("s_waitcnt lgkmcnt(0)")
    srd(A, SO, 40, 41, 2048 * 640 * 2)
    srd(A, SB2, 38, 39, 1280)
    A(f"s_add_u32 s44, s42, {WS_OMG}")
    A("s_addc_u32 s45, s43, 0")
    srd(A, SOM, 44, 45, 8192)
    A(f"s_cmp_eq_u32 s{S_W}, 3")
    A("s_cbranch_scc1 K3_SET_ATT")
    A(f"s_add_u32 s44, s42, {WS_H}")
    A("s_addc_u32 s45, s43, 0")
    srd(A, SA, 44, 45, 2048 * 1728 * 2)
    srd(A, SB_, 36, 37, 1728 * 640 * 2)
    A("s_movk_i32 s46, 3456")
    A(f"s_mul_i32 s{S_AOFF}, s{S_W}, 1152")
    A(f"s_mul_i32 s{S_BOFF}, s{S_W}, {576*1280}")
    A("s_branch K3_SET_DONE")
    A.label("K3_SET_ATT")
    A(f"s_add_u32 s44, s42, {WS_PQS}")
    A("s_addc_u32 s45, s43, 0")
    srd(A, SA, 44, 45, 2048 * 640 * 2)
    A(f"s_add_u32 s44, s42, {WS_M}")
    A("s_addc_u32 s45, s43, 0")
    srd(A, SB_, 44, 45, 640 * 640 * 2)
    A("s_movk_i32 s46, 1280")
    A(f"s_mov_b32 s{S_AOFF}, 0")
    A(f"s_mov_b32 s{S_BOFF}, 0")
    A.label("K3_SET_DONE")
    A(f"s_mul_i32 s{S_LB}, s{S_W}, {4*K3_SLOT}")
    A(f"s_lshl_b32 s{S_T0}, s{S_RT}, 6")
    A(f"s_lshl_b32 s{S_T1}, s{S_W}, 4")
    A(f"s_add_u32 s{S_T0}, s{S_T0}, s{S_T1}")
    A(f"v_add_u32 v5, s{S_T0}, v4")
    A("v_lshlrev_b32 v1, 2, v5")
    A(f"buffer_load_dword v110, v1, s[{SOM}:{SOM+3}], 0 offen")
    A(f"s_mul_i32 s{S_T1}, s{S_CT}, 160")
    A("v_lshlrev_b32 v1, 3, v3")
    A(f"v_add_u32 v1, s{S_T1}, v1")
    for j in range(5):
        A(f"buffer_load_dwordx2 v[{112+2*j}:{113+2*j}], v1, s[{SB2}:{SB2+3}], 0 offen offset:{32*j}")
    A("v_mul_u32_u24 v111, 1280, v5")
    A("v_add_u32 v111, v111, v1")
    VAO, VBO = 6, 10
    A("v_lshrrev_b32 v1, 2, v2")
    A("v_sub_u32 v15, 0, v3")
    A("v_and_b32 v15, 3, v15")
    A("v_and_b32 v16, 3, v2")
    A("v_xor_b32 v16, v16, v15")
    A("v_lshlrev_b32 v16, 4, v16")
    A(f"s_lshl_b32 s{S_T0}, s{S_RT}, 6")
    A(f"v_add_u32 v1, s{S_T0}, v1")
    A("v_mul_lo_u32 v1, v1, s46")
    A(f"v_add_u32 v{VAO}, v1, v16")
    A("s_lshl_b32 s47, s46, 4")
    for i in range(1, 4):
        A(f"v_add_u32 v{VAO+i}, s47, v{VAO+i-1}")
    A(f"s_mul_i32 s{S_T1}, s{S_CT}, 160")
    for i in range(5):
        A(f"v_add_u32 v1, {64*i}, v2")
        A("v_mul_u32_u24 v15, 6554, v1")
        A("v_lshrrev_b32 v15, 16, v15")
        A("v_mul_u32_u24 v16, 10, v15")
        A("v_sub_u32 v16, v1, v16")
        A("v_lshrrev_b32 v17, 3, v15")
        A("v_and_b32 v17, 1, v17")
        A("v_lshlrev_b32 v17, 2, v17")
        A("v_xor_b32 v15, v15, v17")
        A("v_mul_u32_u24 v15, 1280, v15")
        A("v_lshlrev_b32 v16, 4, v16")
        A("v_add_u32 v15, v15, v16")
        A(f"v_add_u32 v{VBO+i}, s{S_T1}, v15")
    A("v_lshrrev_b32 v1, 2, v4")
    A("v_sub_u32 v18, 0, v1")
    A("v_and_b32 v18, 3, v18")
    A("v_xor_b32 v18, v18, v3")
    A("v_lshlrev_b32 v18, 4, v18")
    A("v_lshlrev_b32 v15, 6, v4")
    A("v_add_u32 v15, v15, v18")
    A(f"v_add_u32 v15, s{S_LB}, v15")
    A("v_lshlrev_b32 v18, 3, v3")
    A("v_add_u32 v18, v18, v1")
    A("v_and_b32 v19, 1, v3")
    A("v_lshlrev_b32 v19, 2, v19")
    A("v_add_u32 v20, v18, v19")
    A("v_xor_b32 v19, 4, v19")
    A("v_add_u32 v21, v18, v19")
    A("v_and_b32 v19, 3, v2")
    A("v_lshlrev_b32 v19, 3, v19")
    A(f"s_add_u32 s{S_T0}, s{S_LB}, 4096")
    A("v_mul_u32_u24 v16, 160, v20")
    A("v_add_u32 v16, v16, v19")
    A(f"v_add_u32 v16, s{S_T0}, v16")
    A("v_mul_u32_u24 v17, 160, v21")
    A("v_add_u32 v17, v17, v19")
    A(f"v_add_u32 v17, s{S_T0}, v17")
    FR = [22, 58]
    ACC = 128
    def acc(mt, j):
        return ACC + 4 * (mt * 5 + j)
    for i in range(80):
        A(f"v_mov_b32 v{ACC+i}, 0")

    def issue(t):
        slot = t % 4
        base = slot * K3_SLOT
        for i in range(4):
            A(f"s_add_u32 m0, s{S_LB}, {base + 1024*i}")
            A("s_nop 0")
            A(f"buffer_load_dwordx4 v{VAO+i}, s[{SA}:{SA+3}], s{S_AOFF} offen lds")
        for i in range(5):
            A(f"s_add_u32 m0, s{S_LB}, {base + 4096 + 1024*i}")
            A("s_nop 0")
            A(f"buffer_load_dwordx4 v{VBO+i}, s[{SB_}:{SB_+3}], s{S_BOFF} offen lds")
        A(f"s_add_u32 s{S_AOFF}, s{S_AOFF}, 64")
        A(f"s_add_u32 s{S_BOFF}, s{S_BOFF}, {32*1280}")

    def frag_reads(t):
        slot = t % 4
        base = slot * K3_SLOT
        fs = FR[t & 1]
        out = []
        for mt in range(4):
            out.append(f"ds_read_b128 v[{fs+4*mt}:{fs+4*mt+3}], v15 offset:{base + mt*1024}")
        for j in range(5):
            for hh in range(2):
                r = fs + 16 + 4 * j + 2 * hh
                out.append(f"ds_read_b64_tr_b16 v[{r}:{r+1}], v{16+hh} offset:{base + 32*j}")
        return out

    N = 20
    A(f"s_cmp_eq_u32 s{S_W}, 3")
    A("s_cbranch_scc0 K3_PRO_FFN")
    for t in range(4):
        issue(t)
    A("s_waitcnt vmcnt(27)")
    for r in frag_reads(0):
        A(r)
    A("s_branch K3_STEP0")
    A.label("K3_PRO_FFN")
    for t in range(2, 6):
        issue(t)
    A("s_waitcnt vmcnt(27)")
    for r in frag_reads(2):
        A(r)
    A("s_branch K3_STEP2")
    for t in range(N):
        if t in (0, 2):
            A.label(f"K3_STEP{t}")
        A("s_waitcnt lgkmcnt(0)")
        if t + 4 < N:
            issue(t + 4)
        rd = []
        if t + 1 < N:
            outstanding_after = 9 * (min(t + 4, N - 1) - (t + 1))
            A(f"s_waitcnt vmcnt({outstanding_after})")
            rd = frag_reads(t + 1)
        fs = FR[t & 1]
        mf = []
        for j in range(5):
            for mt in range(4):
                x = f"v[{fs+4*mt}:{fs+4*mt+3}]"
                w = f"v[{fs+16+4*j}:{fs+16+4*j+3}]"
                a = f"v[{acc(mt,j)}:{acc(mt,j)+3}]"
                mf.append(f"v_mfma_f32_16x16x32_bf16 {a}, {w}, {x}, {a}")
        k = 0
        for m in mf:
            A(m)
            if k < len(rd):
                A(rd[k]); k += 1
        while k < len(rd):
            A(rd[k]); k += 1
    A("s_nop 7")
    A("s_nop 7")
    A("s_barrier")
    A(f"s_mul_i32 s{S_T0}, s{S_W}, 20480")
    A("v_lshlrev_b32 v1, 4, v2")
    A(f"v_add_u32 v5, s{S_T0}, v1")
    for i in range(20):
        A(f"ds_write_b128 v5, v[{ACC+4*i}:{ACC+4*i+3}] offset:{1024*i}")
    A("s_waitcnt lgkmcnt(0)")
    A("s_barrier")
    A(f"s_mul_i32 s{S_T0}, s{S_W}, 5120")
    A(f"v_add_u32 v5, s{S_T0}, v1")
    A("v_add_u32 v6, 40960, v5")
    for j in range(5):
        A(f"ds_read_b128 v[{22+16*j}:{25+16*j}], v5 offset:{1024*j}")
        A(f"ds_read_b128 v[{26+16*j}:{29+16*j}], v5 offset:{20480+1024*j}")
        A(f"ds_read_b128 v[{30+16*j}:{33+16*j}], v6 offset:{1024*j}")
        A(f"ds_read_b128 v[{34+16*j}:{37+16*j}], v6 offset:{20480+1024*j}")
    A("s_waitcnt vmcnt(0) lgkmcnt(0)")
    for j in range(5):
        b = 22 + 16 * j
        for r in range(4):
            A(f"v_add_f32 v{b+r}, v{b+r}, v{b+4+r}")
        for r in range(4):
            A(f"v_add_f32 v{b+r}, v{b+r}, v{b+8+r}")
        A(f"v_lshlrev_b32 v{b+4}, 16, v{112+2*j}")
        A(f"v_and_b32 v{b+5}, 0xffff0000, v{112+2*j}")
        A(f"v_lshlrev_b32 v{b+6}, 16, v{113+2*j}")
        A(f"v_and_b32 v{b+7}, 0xffff0000, v{113+2*j}")
        for r in range(4):
            A(f"v_add_f32 v{b+r}, v{b+r}, v{b+4+r}")
        for r in range(4):
            A(f"v_fma_f32 v{b+r}, v{b+r}, v110, v{b+12+r}")
        A(f"v_cvt_pk_bf16_f32 v{b+8}, v{b}, v{b+1}")
        A(f"v_cvt_pk_bf16_f32 v{b+9}, v{b+2}, v{b+3}")
        A(f"buffer_store_dwordx2 v[{b+8}:{b+9}], v111, s[{SO}:{SO+3}], 0 offen offset:{32*j}")
    A.label("K3_END")
    A("s_endpgm")
    kd(A, name, 208)

def main():
    A = Asm()
    hdr = open(f"cdna_kernels/{NAME}.s.ref").read().splitlines()
    for l in hdr:
        if l.startswith("; @launch"):
            break
        A.raw(l)
    A.raw(f"; @launch kernel=k1_gemm_kernel grid=(256,1,1) block=(512,1,1) lds={K1_LDS}")
    A.raw(f"; @launch kernel=k2_small_kernel grid=(256,1,1) block=(256,1,1) lds={K2_LDS}")
    A.raw(f"; @launch kernel={NAME}_kernel grid=(256,1,1) block=(256,1,1) lds={K3_LDS}")
    A.raw('.amdgcn_target "amdgcn-amd-amdhsa--gfx950"')
    A.raw(".text")
    gen_k1(A)
    gen_k2(A)
    gen_k3(A)
    out = sys.argv[1] if len(sys.argv) > 1 else f"cdna_kernels/{NAME}.s"
    open(out, "w").write("\n".join(A.lines) + "\n")

main()
```

```python
import sys

NAME = "gated_mix__linear_attn_block__dense_activation_gelu__prompt"

WS_H = 0
WS_PQ = 0x6C0000
WS_PQS = 0x940000
WS_M = 0xBC0000
WS_OMG = 0xC88000
WS_KVP = 0xC8A000
WS_W2B = 0xD20000
KVC_RT = 53760
KVP_BYTES = 11 * KVC_RT

LOG2E = 0x3FB8AA3B
def f32(x):
    import struct
    return struct.unpack("<I", struct.pack("<f", x))[0]

import os
STAMP = int(os.environ.get("STAMP", "0"))
WS_DBG = 0x1000000
class Asm:
    def __init__(self):
        self.lines = []
        self.nst = 0
    def stamp(self, i):
        if STAMP:
            self(f"s_memtime s[{60+2*i}:{61+2*i}]")
    def stamp_flush(self, kidx, ws_lo, ws_hi):
        if not STAMP:
            return
        n = 12
        self("s_getreg_b32 s82, hwreg(HW_REG_XCC_ID)")
        self("s_waitcnt lgkmcnt(0)")
        self(f"s_add_u32 s88, s{ws_lo}, {WS_DBG + kidx*0x40000}")
        self(f"s_addc_u32 s89, s{ws_hi}, 0")
        self("s_mov_b32 s92, s88")
        self("s_and_b32 s93, s89, 0xffff")
        self("s_mov_b32 s94, 0x40000")
        self("s_mov_b32 s95, 0x00020000")
        self("v_lshrrev_b32 v250, 6, v0")
        self("s_lshl_b32 s88, s2, 4")
        self("v_add_u32 v250, s88, v250")
        self("v_lshlrev_b32 v250, 6, v250")
        for i in range(n):
            self(f"v_mov_b32 v251, s{60+2*i}")
            self(f"buffer_store_dword v251, v250, s[92:95], 0 offen offset:{4*i}")
        self.nst = 0
    def __call__(self, s):
        self.lines.append("    " + s)
    def label(self, l):
        self.lines.append(l + ":")
    def raw(self, s):
        self.lines.append(s)

def vr(a, n=1):
    return f"v{a}" if n == 1 else f"v[{a}:{a+n-1}]"
def sr(a, n=1):
    return f"s{a}" if n == 1 else f"s[{a}:{a+n-1}]"

def srd(A, d, lo, hi, nbytes):
    A(f"s_mov_b32 s{d}, s{lo}")
    A(f"s_and_b32 s{d+1}, s{hi}, 0xffff")
    A(f"s_mov_b32 s{d+2}, {nbytes}")
    A(f"s_mov_b32 s{d+3}, 0x00020000")

def kd(A, name, vgpr, sgpr=102):
    A.raw('.section .rodata,"a"')
    A.raw(".p2align 6")
    A.raw(f".amdhsa_kernel {name}")
    acc = (vgpr + 3) // 4 * 4
    A.raw(f"  .amdhsa_next_free_vgpr {vgpr}")
    A.raw(f"  .amdhsa_next_free_sgpr {sgpr}")
    A.raw(f"  .amdhsa_accum_offset {acc}")
    A.raw("  .amdhsa_group_segment_fixed_size 0")
    A.raw("  .amdhsa_kernarg_size 96")
    A.raw("  .amdhsa_user_sgpr_count 2")
    A.raw("  .amdhsa_user_sgpr_kernarg_segment_ptr 1")
    A.raw("  .amdhsa_system_sgpr_workgroup_id_x 1")
    A.raw(".end_amdhsa_kernel")
    A.raw(".text")

def khead(A, name):
    A.raw(f".globl {name}")
    A.raw(".p2align 8")
    A.raw(f".type {name},@function")
    A.label(name)

K1_SLOT = 45056
K1_WOFF = 24576
K1_LDS = 3 * K1_SLOT

def gen_k1(A):
    name = "k1_gemm_kernel"
    khead(A, name)
    S_RT, S_CT, S_W = 4, 5, 7
    SX, SW, SO, SB = 8, 12, 16, 20
    S_XOFF, S_WOFF, S_WSTR = 24, 25, 26
    S_MX = 27
    S_MW = 30
    S_RS = 33
    S_CB = 46
    S_T0, S_T1, S_T2 = 47, 48, 49
    S_TYPE = 50
    S_C1, S_C2, S_C3 = 51, 52, 53
    A.stamp(0)
    A("s_cmp_ge_u32 s2, 256")
    A("s_cbranch_scc1 K1_EXIT")
    A("s_and_b32 s3, s2, 7")
    A("s_lshl_b32 s3, s3, 5")
    A(f"s_lshr_b32 s{S_T0}, s2, 3")
    A(f"s_add_u32 s3, s3, s{S_T0}")
    A("s_cmp_ge_u32 s3, 253")
    A("s_cbranch_scc1 K1_EXIT")
    A("s_load_dwordx4 s[36:39], s[0:1], 0")
    A("s_load_dwordx4 s[40:43], s[0:1], 32")
    A("s_load_dwordx2 s[44:45], s[0:1], 88")
    A(f"s_mul_i32 s{S_CT}, s3, 373")
    A(f"s_lshr_b32 s{S_CT}, s{S_CT}, 12")
    A(f"s_mul_i32 s{S_T0}, s{S_CT}, 11")
    A(f"s_sub_u32 s{S_RT}, s3, s{S_T0}")
    A("v_lshrrev_b32 v1, 6, v0")
    A("v_and_b32 v2, 63, v0")
    A("s_nop 0")
    A(f"v_readfirstlane_b32 s{S_W}, v1")
    A("v_lshrrev_b32 v3, 4, v2")
    A("v_and_b32 v4, 15, v2")
    A("s_waitcnt lgkmcnt(0)")
    srd(A, SX, 36, 37, 2048 * 640 * 2)
    A(f"s_cmp_lt_u32 s{S_CT}, 8")
    A("s_cbranch_scc1 K1_SET_KV")
    A(f"s_cmp_lt_u32 s{S_CT}, 12")
    A("s_cbranch_scc1 K1_SET_Q")
    A(f"s_mov_b32 s{S_TYPE}, 2")
    srd(A, SW, 40, 41, 640 * 1728 * 2)
    A(f"s_mov_b32 s{S_RS}, 3456")
    A(f"s_sub_u32 s{S_T0}, s{S_CT}, 12")
    A(f"s_mul_i32 s{S_CB}, s{S_T0}, 320")
    A(f"s_add_u32 s{S_T1}, s44, {WS_H}")
    A(f"s_addc_u32 s{S_T2}, s45, 0")
    srd(A, SO, S_T1, S_T2, 2048 * 1728 * 2)
    A("s_branch K1_SET_DONE")
    A.label("K1_SET_Q")
    A(f"s_mov_b32 s{S_TYPE}, 1")
    srd(A, SW, 38, 39, 640 * 1920 * 2)
    A(f"s_mov_b32 s{S_RS}, 3840")
    A(f"s_sub_u32 s{S_T0}, s{S_CT}, 8")
    A(f"s_mul_i32 s{S_CB}, s{S_T0}, 320")
    A(f"s_add_u32 s{S_T1}, s44, {WS_PQ}")
    A(f"s_addc_u32 s{S_T2}, s45, 0")
    srd(A, SO, S_T1, S_T2, 2048 * 640 * 2)
    A("s_branch K1_SET_DONE")
    A.label("K1_SET_KV")
    A(f"s_mov_b32 s{S_TYPE}, 0")
    srd(A, SW, 38, 39, 640 * 1920 * 2)
    A(f"s_mov_b32 s{S_RS}, 3840")
    A(f"s_mul_i32 s{S_CB}, s{S_CT}, 160")
    A(f"s_add_u32 s{S_T1}, s44, {WS_KVP}")
    A(f"s_addc_u32 s{S_T2}, s45, 0")
    srd(A, SO, S_T1, S_T2, KVP_BYTES)
    A.label("K1_SET_DONE")
    srd(A, SB, 42, 43, 1728 * 2)
    A(f"s_lshl_b32 s{S_WSTR}, s{S_RS}, 6")
    A(f"s_mov_b32 s{S_XOFF}, 0")
    A(f"s_mov_b32 s{S_WOFF}, 0")
    A(f"s_mul_i32 s{S_MX}, s{S_W}, 3072")
    A(f"s_add_u32 s{S_MX+1}, s{S_MX}, 1024")
    A(f"s_add_u32 s{S_MX+2}, s{S_MX}, 2048")
    A(f"s_lshl_b32 s{S_MW}, s{S_W}, 10")
    A(f"s_add_u32 s{S_MW}, s{S_MW}, {K1_WOFF}")
    A(f"s_add_u32 s{S_MW+1}, s{S_MW}, 8192")
    A(f"s_add_u32 s{S_T0}, s{S_MW}, 16384")
    A(f"s_cmp_lt_u32 s{S_W}, 4")
    A(f"s_cselect_b32 s{S_MW+2}, s{S_T0}, s{S_MW+1}")
    VXO, VWO = 6, 9
    A(f"s_mul_i32 s{S_T0}, s{S_W}, 24")
    A(f"s_mul_i32 s{S_T1}, s{S_RT}, 192")
    A(f"s_add_u32 s{S_T0}, s{S_T0}, s{S_T1}")
    A("v_lshrrev_b32 v1, 3, v2")
    A("v_and_b32 v5, 7, v2")
    A("v_xor_b32 v5, v5, v1")
    A("v_lshlrev_b32 v5, 4, v5")
    A(f"v_add_u32 v1, s{S_T0}, v1")
    A(f"s_movk_i32 s{S_T1}, 1280")
    A(f"v_mul_lo_u32 v1, v1, s{S_T1}")
    A(f"v_add_u32 v{VXO}, v1, v5")
    A(f"v_add_u32 v{VXO+1}, {8*1280}, v{VXO}")
    A(f"v_add_u32 v{VXO+2}, {16*1280}, v{VXO}")
    for i in range(3):
        if i == 0:
            A(f"s_mov_b32 s{S_T0}, s{S_W}")
        elif i == 1:
            A(f"s_add_u32 s{S_T0}, s{S_W}, 8")
        else:
            A(f"s_add_u32 s{S_T0}, s{S_W}, 16")
            A(f"s_add_u32 s{S_T1}, s{S_W}, 8")
            A(f"s_cmp_lt_u32 s{S_W}, 4")
            A(f"s_cselect_b32 s{S_T0}, s{S_T0}, s{S_T1}")
        A(f"s_lshl_b32 s{S_T0}, s{S_T0}, 6")
        A(f"v_add_u32 v1, s{S_T0}, v2")
        A(f"s_movk_i32 s{S_T1}, 3277")
        A(f"v_mul_lo_u32 v5, v1, s{S_T1}")
        A("v_lshrrev_b32 v5, 16, v5")
        A("v_mul_u32_u24 v12, 20, v5")
        A("v_sub_u32 v12, v1, v12")
        A("v_lshrrev_b32 v13, 3, v5")
        A("v_and_b32 v13, 1, v13")
        A("v_lshlrev_b32 v13, 1, v13")
        A("v_xor_b32 v12, v12, v13")
        A(f"v_mul_lo_u32 v5, v5, s{S_RS}")
        A("v_lshlrev_b32 v13, 4, v12")
        A(f"v_add_u32 v5, v5, v13")
        A(f"v_add_u32 v5, s{S_CB}, v5")
        A(f"s_cmp_lg_u32 s{S_TYPE}, 0")
        A(f"s_cbranch_scc1 K1_WOFF_DONE{i}")
        A("v_cmp_le_u32 vcc, 10, v12")
        A("v_mov_b32 v13, 0")
        A("v_mov_b32 v14, 10")
        A("v_cndmask_b32 v13, v13, v14, vcc")
        A("v_sub_u32 v14, v12, v13")
        A("v_lshlrev_b32 v13, 3, v13")
        A("v_sub_u32 v5, v5, v13")
        A("v_cmp_le_u32 vcc, 5, v14")
        A("v_mov_b32 v13, 1280")
        A("v_mov_b32 v14, 2480")
        A("v_cndmask_b32 v13, v13, v14, vcc")
        A("v_add_u32 v5, v5, v13")
        A.label(f"K1_WOFF_DONE{i}")
        A(f"v_mov_b32 v{VWO+i}, v5")
    VB = 12
    A(f"s_and_b32 s{S_T0}, s{S_W}, 3")
    A(f"s_lshr_b32 s{S_T1}, s{S_W}, 2")
    A(f"s_mul_i32 s{S_T2}, s{S_T0}, 48")
    A(f"v_add_u32 v1, s{S_T2}, v4")
    A("v_lshlrev_b32 v1, 7, v1")
    A("v_and_b32 v5, 7, v2")
    A("v_xor_b32 v24, v3, v5")
    A("v_lshlrev_b32 v24, 4, v24")
    A(f"v_add_u32 v{VB}, v1, v24")
    A(f"v_xor_b32 v{VB+1}, 64, v{VB}")
    A("v_lshlrev_b32 v1, 3, v3")
    A("v_lshrrev_b32 v5, 2, v4")
    A("v_add_u32 v1, v1, v5")
    A("v_mul_u32_u24 v1, 320, v1")
    A("v_and_b32 v5, 3, v2")
    A("v_lshlrev_b32 v5, 3, v5")
    A("v_add_u32 v1, v1, v5")
    A(f"s_mul_i32 s{S_T2}, s{S_T1}, 160")
    A(f"v_add_u32 v1, s{S_T2}, v1")
    A("v_and_b32 v5, 1, v3")
    A("v_lshlrev_b32 v5, 5, v5")
    A("v_add_u32 v24, v1, v5")
    A("v_sub_u32 v25, v1, v5")
    A(f"s_cmp_eq_u32 s{S_T1}, 0")
    A("s_cbranch_scc1 K1_NH0")
    A(f"v_mov_b32 v{VB+2}, v25")
    A(f"v_mov_b32 v{VB+3}, v24")
    A("s_branch K1_NHD")
    A.label("K1_NH0")
    A(f"v_mov_b32 v{VB+2}, v24")
    A(f"v_mov_b32 v{VB+3}, v25")
    A.label("K1_NHD")
    VB1 = 148
    A(f"s_cmp_lg_u32 s{S_TYPE}, 2")
    A("s_cbranch_scc1 K1_NOB1")
    A(f"s_mul_i32 s{S_T2}, s{S_T1}, 160")
    A(f"s_add_u32 s{S_T2}, s{S_T2}, s{S_CB}")
    A("v_lshlrev_b32 v1, 3, v3")
    A(f"v_add_u32 v1, s{S_T2}, v1")
    for j in range(5):
        A(f"buffer_load_dwordx2 v[{VB1+2*j}:{VB1+2*j+1}], v1, s[{SB}:{SB+3}], 0 offen offset:{32*j}")
    A.label("K1_NOB1")

    FR = [24, 56]
    ACC = 88
    def acc(mt, j):
        return ACC + 4 * (mt * 5 + j)
    for i in range(60):
        A(f"v_mov_b32 v{ACC+i}, 0")

    S_M = 60 if not STAMP else 86
    S_S, S_DS, S_DD, S_RD = 54, 55, 58, 59
    S_M0 = 96
    VX0, VX1, VW0, VW1 = VB, VB + 1, VB + 2, VB + 3

    def dma_instr(i):
        if i < 3:
            return f"buffer_load_dwordx4 v{VXO+i}, s[{SX}:{SX+3}], s{S_XOFF} offen lds"
        return f"buffer_load_dwordx4 v{VWO+i-3}, s[{SW}:{SW+3}], s{S_WOFF} offen lds"

    def set_m0s():
        for i in range(3):
            A(f"s_add_u32 s{S_M0+i}, s{S_MX+i}, s{S_DS}")
            A(f"s_add_u32 s{S_M0+3+i}, s{S_MW+i}, s{S_DS}")

    def adv_group():
        A(f"s_add_u32 s{S_XOFF}, s{S_XOFF}, 128")
        A(f"s_add_u32 s{S_WOFF}, s{S_WOFF}, s{S_WSTR}")
        A(f"s_add_u32 s{S_DS}, s{S_DS}, {K1_SLOT}")
        A(f"s_cmp_eq_u32 s{S_DS}, {3*K1_SLOT}")
        A(f"s_cselect_b32 s{S_DS}, 0, s{S_DS}")

    def frag_reads(ks):
        fs = FR[ks ^ 1] if False else None
        return None

    def reads(ks, fs):
        out = []
        for mt in range(3):
            out.append(f"ds_read_b128 v[{fs+4*mt}:{fs+4*mt+3}], v{VB+ks} offset:{mt*2048}")
        for j in range(5):
            for hh in range(2):
                off = K1_WOFF + (32 * ks + 4 * hh) * 320 + 32 * j
                r = fs + 12 + 4 * j + 2 * hh
                out.append(f"ds_read_b64_tr_b16 v[{r}:{r+1}], v{VB+2+(j&1)} offset:{off}")
        return out

    def mfmas(fs, swapped):
        mf = []
        for j in range(5):
            for mt in range(3):
                x = f"v[{fs+4*mt}:{fs+4*mt+3}]"
                w = f"v[{fs+12+4*j}:{fs+12+4*j+3}]"
                a = f"v[{acc(mt,j)}:{acc(mt,j)+3}]"
                mf.append(f"v_mfma_f32_16x16x32_bf16 {a}, {w}, {x}, {a}" if swapped else f"v_mfma_f32_16x16x32_bf16 {a}, {x}, {w}, {a}")
        return mf

    def phase(mf, rd, dmas, tag):
        k = 0
        dpos = {2: 0, 7: 1, 12: 2}
        for i, m in enumerate(mf):
            A(m)
            if k < len(rd):
                A(rd[k]); k += 1
            if i in dpos and dmas:
                d = dmas[dpos[i]]
                A(f"s_cbranch_scc0 {tag}_{d}")
                A(f"s_mov_b32 m0, s{S_M0+d}")
                A("s_nop 0")
                A(dma_instr(d))
                A.label(f"{tag}_{d}")
        while k < len(rd):
            A(rd[k]); k += 1

    def mainloop(swapped, tag):
        A(f"s_mov_b32 s{S_DS}, 0")
        A.stamp(1)
        for g in range(3):
            set_m0s()
            for d in range(6 if g < 2 else 3):
                A(f"s_mov_b32 m0, s{S_M0+d}")
                A("s_nop 0")
                A(dma_instr(d))
            if g < 2:
                adv_group()
        A("s_waitcnt vmcnt(9)")
        A.stamp(2)
        A("s_barrier")
        A.stamp(3)
        for r in reads(0, FR[0]):
            A(r)
        A(f"s_mov_b32 s{S_S}, 0")
        A.label(f"K1_LOOP_{tag}")
        A("s_waitcnt lgkmcnt(0)")
        A(f"s_cmp_lt_u32 s{S_S}, 8")
        phase(mfmas(FR[0], swapped), reads(1, FR[1]), [3, 4, 5], f"K1A{tag}")
        A(f"s_cbranch_scc0 K1_NOADV_{tag}")
        adv_group()
        set_m0s()
        A.label(f"K1_NOADV_{tag}")
        A("s_waitcnt lgkmcnt(0)")
        A(f"s_cmp_eq_u32 s{S_S}, 9")
        A(f"s_cbranch_scc1 K1_LAST_{tag}")
        A(f"s_cmp_lt_u32 s{S_S}, 8")
        A(f"s_cbranch_scc1 K1_W6_{tag}")
        A("s_waitcnt vmcnt(0)")
        A.label(f"K1_W6_{tag}")
        A("s_waitcnt vmcnt(6)")
        A("s_barrier")
        A(f"s_add_u32 s{S_RD}, s{S_RD}, 1")
        A(f"s_cmp_eq_u32 s{S_RD}, 3")
        A(f"s_cselect_b32 s{S_RD}, 0, s{S_RD}")
        A(f"s_mov_b32 s{S_T0}, {K1_SLOT}")
        A(f"s_cselect_b32 s{S_T0}, {(-2*K1_SLOT) & 0xffffffff}, s{S_T0}")
        for i in range(4):
            A(f"v_add_u32 v{VB+i}, s{S_T0}, v{VB+i}")
        A(f"s_cmp_lt_u32 s{S_S}, 7")
        phase(mfmas(FR[1], swapped), reads(0, FR[0]), [0, 1, 2], f"K1B{tag}")
        A(f"s_add_u32 s{S_S}, s{S_S}, 1")
        A(f"s_branch K1_LOOP_{tag}")
        A.label(f"K1_LAST_{tag}")
        for m in mfmas(FR[1], swapped):
            A(m)
        A("s_nop 7")
        A("s_nop 7")
        A.stamp(8)

    A(f"s_mov_b32 s{S_RD}, 0")
    A(f"s_cmp_eq_u32 s{S_TYPE}, 0")
    A("s_cbranch_scc1 K1_KV")
    mainloop(True, "qh")
    A("s_barrier")
    A(f"s_and_b32 s{S_T0}, s{S_W}, 3")
    A(f"s_lshr_b32 s{S_T1}, s{S_W}, 2")
    S_MW_, S_NH_, S_IT, S_CP = 54, 55, 58, 96
    A(f"s_mov_b32 s{S_MW_}, s{S_T0}")
    A(f"s_mov_b32 s{S_NH_}, s{S_T1}")
    A(f"s_mov_b32 s{S_IT}, 0")
    T = 24
    A(f"s_cmp_eq_u32 s{S_TYPE}, 2")
    A("s_cbranch_scc1 K1_EPI_H")
    A(f"s_mul_i32 s{S_T2}, s{S_T0}, 48")
    A(f"v_add_u32 v1, s{S_T2}, v4")
    A("v_mul_u32_u24 v1, 336, v1")
    A(f"s_mul_i32 s{S_T2}, s{S_T1}, 160")
    A("v_lshlrev_b32 v5, 3, v3")
    A("v_add_u32 v1, v1, v5")
    A(f"v_add_u32 v1, s{S_T2}, v1")
    A(f"s_mov_b32 s{S_C1}, {LOG2E}")
    A(f"s_mov_b32 s{S_C2}, {f32(1e-6)}")
    A.label("K1_QLOOP")
    for j in range(5):
        a = acc(0, j)
        for r in range(4):
            A(f"v_min_f32 v{T+r}, 0, v{a+r}")
        for r in range(4):
            A(f"v_mul_f32 v{T+r}, s{S_C1}, v{T+r}")
        for r in range(4):
            A(f"v_exp_f32 v{T+r}, v{T+r}")
        for r in range(4):
            A(f"v_max_f32 v{T+4+r}, 0, v{a+r}")
        for r in range(4):
            A(f"v_add_f32 v{T+r}, v{T+r}, v{T+4+r}")
        for r in range(4):
            A(f"v_add_f32 v{T+r}, s{S_C2}, v{T+r}")
        o = 40 + 2 * j
        A(f"v_cvt_pk_bf16_f32 v{o}, v{T}, v{T+1}")
        A(f"v_cvt_pk_bf16_f32 v{o+1}, v{T+2}, v{T+3}")
        A(f"ds_write_b64 v1, v[{o}:{o+1}] offset:{32*j}")
    for i in range(40):
        A(f"v_mov_b32 v{ACC+i}, v{ACC+20+i}")
    A(f"v_add_u32 v1, {16*336}, v1")
    A(f"s_add_u32 s{S_IT}, s{S_IT}, 1")
    A(f"s_cmp_lt_u32 s{S_IT}, 3")
    A("s_cbranch_scc1 K1_QLOOP")
    A("s_waitcnt lgkmcnt(0)")
    A("s_barrier")
    A(f"s_mul_i32 s{S_T2}, s{S_RT}, {192*1280}")
    A(f"s_add_u32 s{S_T2}, s{S_T2}, s{S_CB}")
    for n in range(8):
        if n == 7:
            A(f"s_cmp_ge_u32 s{S_W}, 4")
            A("s_cbranch_scc1 K1_QST")
        A(f"s_add_u32 s{S_T0}, s{S_W}, {8*n}")
        A(f"s_lshl_b32 s{S_T0}, s{S_T0}, 6")
        A(f"v_add_u32 v5, s{S_T0}, v2")
        A("v_mul_u32_u24 v6, 3277, v5")
        A("v_lshrrev_b32 v6, 16, v6")
        A("v_mul_u32_u24 v7, 20, v6")
        A("v_sub_u32 v7, v5, v7")
        A("v_lshlrev_b32 v7, 4, v7")
        A("v_mul_u32_u24 v8, 336, v6")
        A("v_add_u32 v8, v8, v7")
        A(f"ds_read_b128 v[{24+4*n}:{27+4*n}], v8")
        A("v_mul_u32_u24 v6, 1280, v6")
        A(f"v_add_u32 v{72+n}, v6, v7")
    A.label("K1_QST")
    A("s_waitcnt lgkmcnt(0)")
    for n in range(8):
        if n == 7:
            A(f"s_cmp_ge_u32 s{S_W}, 4")
            A("s_cbranch_scc1 K1_END")
        A(f"buffer_store_dwordx4 v[{24+4*n}:{27+4*n}], v{72+n}, s[{SO}:{SO+3}], s{S_T2} offen")
    A("s_branch K1_END")
    A.label("K1_EPI_H")
    c1 = -2.0 * 0.7978845608028654 * 1.4426950408889634
    A(f"s_mov_b32 s{S_C1}, {f32(c1)}")
    A(f"s_mov_b32 s{S_C2}, {f32(c1 * 0.044715)}")
    A(f"v_mov_b32 v8, s{S_C1}")
    for j in range(5):
        A(f"v_lshlrev_b32 v{60+4*j}, 16, v{VB1+2*j}")
        A(f"v_and_b32 v{60+4*j+1}, 0xffff0000, v{VB1+2*j}")
        A(f"v_lshlrev_b32 v{60+4*j+2}, 16, v{VB1+2*j+1}")
        A(f"v_and_b32 v{60+4*j+3}, 0xffff0000, v{VB1+2*j+1}")
    A("v_lshrrev_b32 v5, 2, v4")
    A("v_sub_u32 v5, 0, v5")
    A("v_and_b32 v5, 3, v5")
    A("v_lshrrev_b32 v6, 1, v3")
    A("v_xor_b32 v5, v5, v6")
    A("v_lshlrev_b32 v5, 4, v5")
    A("v_lshlrev_b32 v6, 6, v4")
    A("v_add_u32 v5, v5, v6")
    A("v_and_b32 v6, 1, v3")
    A("v_lshlrev_b32 v6, 3, v6")
    A("v_add_u32 v5, v5, v6")
    A(f"s_lshl_b32 s{S_T2}, s{S_NH_}, 5")
    A(f"v_xor_b32 v6, s{S_T2}, v5")
    A("v_xor_b32 v7, 32, v6")
    for j in range(5):
        A(f"s_mul_i32 s{S_T2}, s{S_NH_}, 80")
        A(f"s_add_u32 s{S_T2}, s{S_T2}, {16*j}")
        A(f"s_lshr_b32 s{S_T2}, s{S_T2}, 5")
        A(f"s_lshl_b32 s{S_CP+j}, s{S_T2}, 12")
    A(f"s_mul_i32 s{S_C3}, s{S_MW_}, 48")
    A.label("K1_HLOOP")
    A(f"s_lshr_b32 s{S_T0}, s{S_C3}, 6")
    A(f"s_mul_i32 s{S_T0}, s{S_T0}, 20480")
    A(f"s_and_b32 s{S_T1}, s{S_C3}, 63")
    A(f"s_lshl_b32 s{S_T1}, s{S_T1}, 6")
    A(f"s_add_u32 s{S_T0}, s{S_T0}, s{S_T1}")
    A(f"v_add_u32 v9, s{S_T0}, v6")
    A(f"v_add_u32 v10, s{S_T0}, v7")
    for j in range(5):
        a = acc(0, j)
        for r in range(4):
            A(f"v_add_f32 v{a+r}, v{a+r}, v{60+4*j+r}")
        for r in range(4):
            A(f"v_mul_f32 v{T+r}, v{a+r}, v{a+r}")
        for r in range(4):
            A(f"v_fma_f32 v{T+r}, v{T+r}, s{S_C2}, v8")
        for r in range(4):
            A(f"v_mul_f32 v{T+r}, v{T+r}, v{a+r}")
        for r in range(4):
            A(f"v_exp_f32 v{T+r}, v{T+r}")
        for r in range(4):
            A(f"v_add_f32 v{T+r}, 1.0, v{T+r}")
        for r in range(4):
            A(f"v_rcp_f32 v{T+r}, v{T+r}")
        A(f"v_add_u32 v11, s{S_CP+j}, v{9+(j&1)}")
        for r in range(4):
            A(f"v_mul_f32 v{T+r}, v{T+r}, v{a+r}")
        o = 40 + 2 * j
        A(f"v_cvt_pk_bf16_f32 v{o}, v{T}, v{T+1}")
        A(f"v_cvt_pk_bf16_f32 v{o+1}, v{T+2}, v{T+3}")
        A(f"ds_write_b64 v11, v[{o}:{o+1}]")
    for i in range(40):
        A(f"v_mov_b32 v{ACC+i}, v{ACC+20+i}")
    A(f"s_add_u32 s{S_C3}, s{S_C3}, 16")
    A(f"s_add_u32 s{S_IT}, s{S_IT}, 1")
    A(f"s_cmp_lt_u32 s{S_IT}, 3")
    A("s_cbranch_scc1 K1_HLOOP")
    A("s_waitcnt lgkmcnt(0)")
    A("s_barrier")
    A("v_lshlrev_b32 v1, 4, v2")
    A(f"s_sub_u32 s{S_C1}, s{S_CT}, 12")
    A(f"s_mul_i32 s{S_C1}, s{S_C1}, 5")
    A(f"s_mul_i32 s{S_C2}, s{S_RT}, 3")
    for n in range(8):
        A(f"s_add_u32 s{S_T0}, s{S_W}, {8*n}")
        A(f"s_lshl_b32 s{S_T1}, s{S_T0}, 10")
        A(f"v_add_u32 v5, s{S_T1}, v1")
        A(f"ds_read_b128 v[{24+4*n}:{27+4*n}], v5")
    A("s_waitcnt lgkmcnt(0)")
    for n in range(8):
        A(f"s_add_u32 s{S_T0}, s{S_W}, {8*n}")
        A(f"s_cmp_ge_u32 s{S_T0}, 60")
        A("s_cbranch_scc1 K1_END")
        A(f"s_lshr_b32 s{S_T1}, s{S_T0}, 2")
        A(f"s_mul_i32 s{S_T2}, s{S_T1}, 13")
        A(f"s_lshr_b32 s{S_T2}, s{S_T2}, 6")
        A(f"s_mul_i32 s{S_C3}, s{S_T2}, 5")
        A(f"s_sub_u32 s{S_T1}, s{S_T1}, s{S_C3}")
        A(f"s_add_u32 s{S_T1}, s{S_T1}, s{S_C1}")
        A(f"s_cmp_ge_u32 s{S_T1}, 54")
        A(f"s_cbranch_scc1 K1_HSK{n}")
        A(f"s_add_u32 s{S_T2}, s{S_T2}, s{S_C2}")
        A(f"s_mul_i32 s{S_T2}, s{S_T2}, 54")
        A(f"s_add_u32 s{S_T2}, s{S_T2}, s{S_T1}")
        A(f"s_lshl_b32 s{S_T2}, s{S_T2}, 12")
        A(f"s_and_b32 s{S_T0}, s{S_T0}, 3")
        A(f"s_lshl_b32 s{S_T0}, s{S_T0}, 10")
        A(f"s_add_u32 s{S_T2}, s{S_T2}, s{S_T0}")
        A(f"buffer_store_dwordx4 v[{24+4*n}:{27+4*n}], v1, s[{SO}:{SO+3}], s{S_T2} offen")
        A.label(f"K1_HSK{n}")
    A("s_branch K1_END")

    A.label("K1_KV")
    mainloop(False, "kv")
    A(f"s_and_b32 s{S_T0}, s{S_W}, 3")
    A(f"s_mul_i32 s{S_T2}, s{S_T0}, 48")
    A(f"s_mul_i32 s{S_C1}, s{S_RT}, 192")
    A(f"s_add_u32 s{S_T2}, s{S_T2}, s{S_C1}")
    A(f"s_mov_b32 s{S_C1}, {LOG2E}")
    A(f"s_mov_b32 s{S_C2}, {f32(1e-6)}")
    KV = 24
    for i in range(40):
        A(f"v_mov_b32 v{KV+i}, 0")
    A("v_mov_b32 v64, 0x3f803f80")
    A("v_mov_b32 v65, 0x3f803f80")
    A("v_cmp_gt_u32 s[54:55], 8, v4")
    PK = 66
    T = 76
    pairs = [(0, 2), (0, 3), (1, 2), (1, 3), (1, 4), (2, 3), (2, 4)]
    for mt in range(3):
        A(f"s_add_u32 s{S_T0}, s{S_T2}, {16*mt}")
        A(f"s_cmp_ge_u32 s{S_T0}, 2048")
        A("s_cbranch_scc1 K1_KV_RED")
        for j in range(5):
            a = acc(mt, j)
            if j <= 2:
                for r in range(4):
                    A(f"v_min_f32 v{T+r}, 0, v{a+r}")
                for r in range(4):
                    A(f"v_mul_f32 v{T+r}, s{S_C1}, v{T+r}")
                for r in range(4):
                    A(f"v_exp_f32 v{T+r}, v{T+r}")
                for r in range(4):
                    A(f"v_max_f32 v{T+4+r}, 0, v{a+r}")
                for r in range(4):
                    A(f"v_add_f32 v{T+r}, v{T+r}, v{T+4+r}")
                for r in range(4):
                    A(f"v_add_f32 v{T+r}, s{S_C2}, v{T+r}")
                if j == 2:
                    for r in range(4):
                        A(f"v_cndmask_b32 v{T+r}, v{a+r}, v{T+r}, s[54:55]")
                src = T
            else:
                src = a
            A(f"v_cvt_pk_bf16_f32 v{PK+2*j}, v{src}, v{src+1}")
            A(f"v_cvt_pk_bf16_f32 v{PK+2*j+1}, v{src+2}, v{src+3}")
        A("s_nop 1")
        for pi, (a, b) in enumerate(pairs):
            d = f"v[{KV+4*pi}:{KV+4*pi+3}]"
            A(f"v_mfma_f32_16x16x16_bf16 {d}, v[{PK+2*a}:{PK+2*a+1}], v[{PK+2*b}:{PK+2*b+1}], {d}")
        for a in range(3):
            d = f"v[{KV+4*(7+a)}:{KV+4*(7+a)+3}]"
            A(f"v_mfma_f32_16x16x16_bf16 {d}, v[{PK+2*a}:{PK+2*a+1}], v[64:65], {d}")
        A("s_nop 7")
    A.label("K1_KV_RED")
    A("s_nop 7")
    A("s_nop 7")
    A("s_barrier")
    A(f"s_mul_i32 s{S_T0}, s{S_W}, 10240")
    A("v_lshlrev_b32 v1, 4, v2")
    A(f"v_add_u32 v5, s{S_T0}, v1")
    for i in range(10):
        A(f"ds_write_b128 v5, v[{KV+4*i}:{KV+4*i+3}] offset:{1024*i}")
    A("s_waitcnt lgkmcnt(0)")
    A("s_barrier")
    A(f"s_mul_i32 s{S_C1}, s{S_RT}, {KVC_RT}")
    A(f"s_mul_i32 s{S_C2}, s{S_CT}, 6400")
    A(f"s_add_u32 s{S_C2}, s{S_C2}, s{S_C1}")
    A(f"s_mul_i32 s{S_C3}, s{S_CT}, 320")
    A(f"s_add_u32 s{S_C3}, s{S_C3}, s{S_C1}")
    A(f"s_add_u32 s{S_C3}, s{S_C3}, {51200 - 6400}")
    A("v_mov_b32 v30, 0x7fffffff")
    for n in range(4):
        A(f"v_add_u32 v8, {512*n}, v0")
        A("v_cmp_gt_u32 vcc, 1600, v8")
        A("s_nop 1")
        A("s_mov_b64 s[56:57], vcc")
        A("v_mul_u32_u24 v9, 41944, v8")
        A("v_lshrrev_b32 v9, 24, v9")
        A("v_mul_u32_u24 v10, 400, v9")
        A("v_sub_u32 v10, v8, v10")
        A("v_mul_u32_u24 v11, 3277, v10")
        A("v_lshrrev_b32 v11, 16, v11")
        A("v_mul_u32_u24 v12, 20, v11")
        A("v_sub_u32 v12, v10, v12")
        A("v_and_b32 v13, 1, v9")
        A("v_mul_u32_u24 v13, 20, v13")
        A("v_add_u32 v11, v11, v13")
        A("v_add_u32 v12, v12, v13")
        A("v_add_u32 v12, 40, v12")
        A("v_lshrrev_b32 v9, 1, v9")
        A("v_subrev_u32 v14, 1600, v8")
        A("v_cmp_le_u32 vcc, 40, v14")
        A("v_mov_b32 v15, 0")
        A("v_mov_b32 v16, 1")
        A("v_cndmask_b32 v15, v15, v16, vcc")
        A("v_mul_u32_u24 v16, 40, v15")
        A("v_sub_u32 v14, v14, v16")
        A("v_cndmask_b32 v9, v15, v9, s[56:57]")
        A("v_cndmask_b32 v11, v14, v11, s[56:57]")
        A("v_lshrrev_b32 v13, 4, v11")
        A("v_lshlrev_b32 v14, 1, v13")
        A("v_lshrrev_b32 v15, 4, v12")
        A("v_add_u32 v14, v14, v15")
        A("v_subrev_u32 v14, 2, v14")
        A("v_add_u32 v13, 7, v13")
        A("v_cndmask_b32 v13, v13, v14, s[56:57]")
        A("v_and_b32 v14, 15, v12")
        A("v_cndmask_b32 v14, 0, v14, s[56:57]")
        A("v_bfe_u32 v15, v11, 2, 2")
        A("v_lshlrev_b32 v15, 4, v15")
        A("v_add_u32 v14, v14, v15")
        A("v_lshlrev_b32 v14, 4, v14")
        A("v_and_b32 v15, 3, v11")
        A("v_lshlrev_b32 v15, 2, v15")
        A("v_add_u32 v14, v14, v15")
        A("v_lshlrev_b32 v13, 10, v13")
        A("v_add_u32 v14, v14, v13")
        A("v_mul_u32_u24 v9, 40960, v9")
        A("v_add_u32 v14, v14, v9")
        A("v_and_b32 v14, 0xffff, v14")
        for m in range(4):
            A(f"ds_read_b32 v{20+m}, v14 offset:{10240*m}")
        A("v_lshlrev_b32 v15, 2, v8")
        A(f"v_add_u32 v16, s{S_C2}, v15")
        A(f"v_add_u32 v17, s{S_C3}, v15")
        A("v_cndmask_b32 v16, v17, v16, s[56:57]")
        if n == 3:
            A("v_cmp_gt_u32 vcc, 1680, v8")
            A("s_nop 1")
            A("v_cndmask_b32 v16, v30, v16, vcc")
        A("s_waitcnt lgkmcnt(0)")
        A("v_add_f32 v20, v20, v21")
        A("v_add_f32 v22, v22, v23")
        A("v_add_f32 v20, v20, v22")
        A(f"buffer_store_dword v20, v16, s[{SO}:{SO+3}], 0 offen")
    A.label("K1_END")
    A.stamp(9)
    A.stamp_flush(0, 44, 45)
    A.label("K1_EXIT")
    A("s_endpgm")
    kd(A, name, 256 if STAMP else 160)

K2_LDS = 8192
def gen_k2(A):
    name = "k2_small_kernel"
    khead(A, name)
    SKV, SWO, SPQ, SPS, SXX, SGW, SM, SOM = 8, 12, 16, 20, 24, 28, 32, 36
    A.stamp(0)
    A("s_cmp_ge_u32 s2, 256")
    A("s_cbranch_scc1 K2_EXIT")
    A("s_load_dwordx2 s[40:41], s[0:1], 0")
    A("s_load_dwordx2 s[42:43], s[0:1], 16")
    A("s_load_dwordx2 s[44:45], s[0:1], 64")
    A("s_load_dwordx2 s[46:47], s[0:1], 88")
    A("s_waitcnt lgkmcnt(0)")
    srd(A, SXX, 40, 41, 2048 * 640 * 2)
    srd(A, SWO, 42, 43, 640 * 640 * 2)
    srd(A, SGW, 44, 45, 1280)
    def wssrd(d, off, n):
        A(f"s_add_u32 s48, s46, {off}")
        A("s_addc_u32 s49, s47, 0")
        srd(A, d, 48, 49, n)
    wssrd(SKV, WS_KVP, KVP_BYTES)
    wssrd(SPQ, WS_PQ, 2048 * 640 * 2)
    wssrd(SPS, WS_PQS, 2048 * 640 * 2)
    wssrd(SM, WS_M, 640 * 640 * 2)
    wssrd(SOM, WS_OMG, 8192)
    A("s_lshr_b32 s4, s2, 3")
    A("s_and_b32 s5, s2, 7")
    A("v_mul_u32_u24 v1, 6554, v0")
    A("v_lshrrev_b32 v1, 16, v1")
    A("v_mul_u32_u24 v2, 10, v1")
    A("v_sub_u32 v2, v0, v2")
    A("s_mul_i32 s6, s4, 25600")
    A("s_mul_i32 s7, s5, 160")
    A("s_add_u32 s6, s6, s7")
    A("v_lshlrev_b32 v3, 4, v2")
    A("v_add_u32 v3, s6, v3")
    for e in range(20):
        if e * 1280 <= 4095:
            A(f"buffer_load_dwordx4 v[{100+4*e}:{103+4*e}], v3, s[{SWO}:{SWO+3}], 0 offen offset:{e*1280}")
        else:
            A(f"s_mov_b32 s50, {e*1280}")
            A(f"buffer_load_dwordx4 v[{100+4*e}:{103+4*e}], v3, s[{SWO}:{SWO+3}], s50 offen")
    A("v_lshrrev_b32 v4, 5, v0")
    A("v_and_b32 v5, 31, v0")
    A("s_lshl_b32 s6, s2, 3")
    A("v_add_u32 v4, s6, v4")
    A("v_mul_u32_u24 v6, 1280, v4")
    A("v_mul_u32_u24 v7, 40, v5")
    A("v_add_u32 v6, v6, v7")
    for i in range(5):
        A(f"buffer_load_dwordx2 v[{20+2*i}:{21+2*i}], v6, s[{SPQ}:{SPQ+3}], 0 offen offset:{8*i}")
    for i in range(5):
        A(f"buffer_load_dwordx2 v[{30+2*i}:{31+2*i}], v6, s[{SXX}:{SXX+3}], 0 offen offset:{8*i}")
    for i in range(5):
        A(f"buffer_load_dwordx2 v[{40+2*i}:{41+2*i}], v7, s[{SGW}:{SGW+3}], 0 offen offset:{8*i}")
    A("s_load_dwordx2 s[52:53], s[0:1], 48")
    A(f"s_add_u32 s48, s46, {WS_W2B}")
    A("s_addc_u32 s49, s47, 0")
    srd(A, 84, 48, 49, 1728 * 640 * 2)
    A("s_waitcnt lgkmcnt(0)")
    srd(A, 88, 52, 53, 1728 * 640 * 2)
    A("s_lshl_b32 s6, s2, 3")
    for n in range(3):
        A(f"v_add_u32 v8, {256*n}, v0")
        A("v_mul_u32_u24 v12, 820, v8")
        A("v_lshrrev_b32 v12, 16, v12")
        A("v_mul_u32_u24 v13, 80, v12")
        A("v_sub_u32 v13, v8, v13")
        A("v_add_u32 v12, s6, v12")
        A("v_mul_u32_u24 v14, 1280, v12")
        A("v_lshlrev_b32 v15, 4, v13")
        A("v_add_u32 v14, v14, v15")
        if n == 2:
            A("v_cmp_gt_u32 vcc, 128, v0")
            A("v_mov_b32 v15, 0x7fffffff")
            A("s_nop 1")
            A("v_cndmask_b32 v14, v15, v14, vcc")
        A(f"buffer_load_dwordx4 v[{228+4*n}:{231+4*n}], v14, s[88:91], 0 offen")
        A("v_mul_u32_u24 v15, 6554, v13")
        A("v_lshrrev_b32 v15, 16, v15")
        A("v_mul_u32_u24 v16, 10, v15")
        A("v_sub_u32 v16, v13, v16")
        A("v_mul_u32_u24 v15, 54, v15")
        A("v_lshrrev_b32 v17, 5, v12")
        A("v_add_u32 v15, v15, v17")
        A("v_mul_u32_u24 v15, 5120, v15")
        A("v_and_b32 v17, 31, v12")
        A("v_lshrrev_b32 v18, 3, v17")
        A("v_and_b32 v18, 1, v18")
        A("v_lshlrev_b32 v18, 2, v18")
        A("v_xor_b32 v17, v17, v18")
        A("v_mul_u32_u24 v17, 160, v17")
        A("v_add_u32 v15, v15, v17")
        A("v_lshlrev_b32 v16, 4, v16")
        A(f"v_add_u32 v{240+n}, v15, v16")
        if n == 2:
            A("v_mov_b32 v15, 0x7fffffff")
            A(f"v_cndmask_b32 v{240+n}, v15, v{240+n}, vcc")
    A("s_cmp_ge_u32 s2, 216")
    A("s_cbranch_scc0 K2_W2OK")
    for n in range(3):
        A(f"v_mov_b32 v{240+n}, 0x7fffffff")
    A.label("K2_W2OK")
    A("v_lshlrev_b32 v8, 2, v0")
    A("v_add_u32 v9, 51200, v8")
    A("v_mov_b32 v12, 0x7fffffff")
    A("v_add_u32 v11, 2048, v9")
    A("v_cmp_gt_u32 vcc, 128, v0")
    A("s_mul_i32 s6, s4, 1600")
    A("v_add_u32 v17, s6, v8")
    A("v_cndmask_b32 v11, v12, v11, vcc")
    A("v_add_u32 v18, 1024, v17")
    A("v_cmp_gt_u32 vcc, 144, v0")
    A("s_nop 1")
    A("v_cndmask_b32 v18, v12, v18, vcc")
    for rt in range(11):
        A(f"s_mov_b32 s50, {rt*KVC_RT}")
        A(f"buffer_load_dword v{50+rt}, v9, s[{SKV}:{SKV+3}], s50 offen")
        A(f"buffer_load_dword v{61+rt}, v9, s[{SKV}:{SKV+3}], s50 offen offset:1024")
        A(f"buffer_load_dword v{72+rt}, v11, s[{SKV}:{SKV+3}], s50 offen")
    for rt in range(11):
        A(f"s_mov_b32 s50, {rt*KVC_RT}")
        A(f"buffer_load_dword v{180+rt}, v17, s[{SKV}:{SKV+3}], s50 offen")
        A(f"buffer_load_dword v{191+rt}, v18, s[{SKV}:{SKV+3}], s50 offen")
    A.stamp(1)
    A("s_waitcnt vmcnt(22)")
    A.stamp(2)
    for n in range(3):
        for rt in range(1, 11):
            A(f"v_add_f32 v{50+11*n}, v{50+11*n}, v{50+11*n+rt}")
    A("v_cvt_pk_bf16_f32 v12, v50, v61")
    A("v_cvt_pk_bf16_f32 v13, v72, v72")
    A("v_lshlrev_b32 v14, 16, v12")
    A("v_and_b32 v15, 0xffff0000, v12")
    A("v_lshlrev_b32 v16, 16, v13")
    A("v_lshlrev_b32 v8, 2, v0")
    A("ds_write_b32 v8, v14")
    A("ds_write_b32 v8, v15 offset:1024")
    A("ds_write_b32 v8, v16 offset:2048")
    A("s_waitcnt vmcnt(0)")
    A.stamp(3)
    for n in range(2):
        for rt in range(1, 11):
            A(f"v_add_f32 v{180+11*n}, v{180+11*n}, v{180+11*n+rt}")
    A("v_cvt_pk_bf16_f32 v12, v180, v191")
    A("v_lshlrev_b32 v14, 16, v12")
    A("v_and_b32 v15, 0xffff0000, v12")
    A("ds_write_b32 v8, v14 offset:4096")
    A("ds_write_b32 v8, v15 offset:5120")
    A("v_mov_b32 v84, 0")
    for i in range(10):
        A(f"v_lshlrev_b32 v12, 16, v{30+i}")
        A(f"v_lshlrev_b32 v13, 16, v{40+i}")
        A("v_fmac_f32 v84, v12, v13")
        A(f"v_and_b32 v12, 0xffff0000, v{30+i}")
        A(f"v_and_b32 v13, 0xffff0000, v{40+i}")
        A("v_fmac_f32 v84, v12, v13")
    for m in (1, 2, 4, 8, 16):
        A(f"ds_swizzle_b32 v12, v84 offset:{(m << 10) | 0x1F}")
        A("s_waitcnt lgkmcnt(0)")
        A("v_add_f32 v84, v84, v12")
    A("s_barrier")
    A.stamp(4)
    A("v_cvt_pk_bf16_f32 v12, v84, v84")
    A("v_lshlrev_b32 v12, 16, v12")
    A(f"s_mov_b32 s50, {f32(-1.4426950408889634)}")
    A("v_mul_f32 v12, s50, v12")
    A("v_exp_f32 v12, v12")
    A("s_nop 0")
    A("v_add_f32 v12, 1.0, v12")
    A("v_rcp_f32 v85, v12")
    A("v_mul_u32_u24 v13, 80, v5")
    for i in range(5):
        A(f"ds_read_b128 v[{60+4*i}:{63+4*i}], v13 offset:{16*i}")
    for i in range(10):
        A(f"v_lshlrev_b32 v{204+2*i}, 16, v{20+i}")
        A(f"v_and_b32 v{205+2*i}, 0xffff0000, v{20+i}")
    A("s_waitcnt lgkmcnt(0)")
    A("v_mov_b32 v86, 0")
    for i in range(20):
        A(f"v_fmac_f32 v86, v{204+i}, v{60+i}")
    A(f"s_mov_b32 s51, {f32(1e-6)}")
    A("v_add_f32 v86, s51, v86")
    A("v_rcp_f32 v86, v86")
    A("s_nop 0")
    A("v_mul_f32 v86, v86, v85")
    for i in range(20):
        A(f"v_mul_f32 v{204+i}, v{204+i}, v86")
    for i in range(10):
        A(f"v_cvt_pk_bf16_f32 v{20+i}, v{204+2*i}, v{205+2*i}")
    A("v_and_b32 v12, 63, v4")
    A("v_lshrrev_b32 v13, 2, v12")
    A("v_sub_u32 v13, 0, v13")
    A("v_and_b32 v13, 3, v13")
    A("v_lshrrev_b32 v14, 6, v4")
    A("v_mul_u32_u24 v14, 81920, v14")
    A("v_lshlrev_b32 v12, 6, v12")
    A("v_add_u32 v14, v14, v12")
    A("v_mul_u32_u24 v15, 20, v5")
    for i in range(5):
        A(f"v_add_u32 v16, {4*i}, v15")
        A("v_lshrrev_b32 v17, 5, v16")
        A("v_lshlrev_b32 v17, 12, v17")
        A("v_bfe_u32 v18, v16, 3, 2")
        A("v_xor_b32 v18, v18, v13")
        A("v_lshlrev_b32 v18, 4, v18")
        A("v_add_u32 v17, v17, v18")
        A("v_and_b32 v18, 4, v16")
        A("v_lshlrev_b32 v18, 1, v18")
        A("v_add_u32 v17, v17, v18")
        A(f"v_add_u32 v{90+i}, v14, v17")
        A(f"buffer_store_dwordx2 v[{20+2*i}:{21+2*i}], v{90+i}, s[{SPS}:{SPS+3}], 0 offen")
    A("v_sub_f32 v12, 1.0, v85")
    A("v_lshlrev_b32 v13, 2, v4")
    A("v_cmp_eq_u32 vcc, 0, v5")
    A("v_mov_b32 v14, 0x7fffffff")
    A("s_nop 1")
    A("v_cndmask_b32 v13, v14, v13, vcc")
    A(f"buffer_store_dword v12, v13, s[{SOM}:{SOM+3}], 0 offen")
    A.stamp(5)
    A("v_mul_u32_u24 v13, 80, v1")
    for i in range(5):
        A(f"ds_read_b128 v[{60+4*i}:{63+4*i}], v13 offset:{4096+16*i}")
    for c in range(8):
        A(f"v_mov_b32 v{204+c}, 0")
    A("s_waitcnt lgkmcnt(0)")
    for e in range(20):
        for c2 in range(4):
            A(f"v_lshlrev_b32 v12, 16, v{100+4*e+c2}")
            A(f"v_and_b32 v14, 0xffff0000, v{100+4*e+c2}")
            A(f"v_fmac_f32 v{204+2*c2}, v{60+e}, v12")
            A(f"v_fmac_f32 v{205+2*c2}, v{60+e}, v14")
    for c2 in range(4):
        A(f"v_cvt_pk_bf16_f32 v{216+c2}, v{204+2*c2}, v{205+2*c2}")
    A("s_mul_i32 s6, s4, 20")
    A("v_add_u32 v13, s6, v1")
    A("v_lshrrev_b32 v12, 5, v13")
    A("s_mul_i32 s7, s5, 20")
    A("v_add_u32 v12, s7, v12")
    A("v_mul_u32_u24 v12, 5120, v12")
    A("v_and_b32 v13, 31, v13")
    A("v_lshrrev_b32 v15, 3, v13")
    A("v_and_b32 v15, 1, v15")
    A("v_lshlrev_b32 v15, 2, v15")
    A("v_xor_b32 v13, v13, v15")
    A("v_mul_u32_u24 v13, 160, v13")
    A("v_add_u32 v13, v13, v12")
    A("v_lshlrev_b32 v12, 4, v2")
    A("v_add_u32 v13, v13, v12")
    A("v_cmp_gt_u32 vcc, 200, v0")
    A("v_mov_b32 v14, 0x7fffffff")
    A("s_nop 1")
    A("v_cndmask_b32 v13, v14, v13, vcc")
    A(f"buffer_store_dwordx4 v[216:219], v13, s[{SM}:{SM+3}], 0 offen")
    for n in range(3):
        A(f"buffer_store_dwordx4 v[{228+4*n}:{231+4*n}], v{240+n}, s[84:87], 0 offen")
    A.label("K2_END")
    A.stamp(9)
    A.stamp_flush(1, 46, 47)
    A.label("K2_EXIT")
    A("s_endpgm")
    kd(A, name, 256 if STAMP else 244)

K3_SLOT = 9216
K3_LDS = 4 * 4 * K3_SLOT
def gen_k3(A):
    name = NAME + "_kernel"
    khead(A, name)
    SA, SB_, SO, SB2, SOM = 8, 12, 16, 20, 24
    S_RT, S_CT, S_W = 4, 5, 7
    S_AOFF, S_BOFF, S_LB = 28, 29, 30
    S_T0, S_T1, S_T2 = 31, 32, 33
    A.stamp(0)
    A("s_cmp_ge_u32 s2, 256")
    A("s_cbranch_scc1 K3_EXIT")
    A("s_load_dwordx4 s[36:39], s[0:1], 48")
    A("s_load_dwordx2 s[40:41], s[0:1], 72")
    A("s_load_dwordx2 s[42:43], s[0:1], 88")
    A("s_and_b32 s3, s2, 7")
    A("s_lshl_b32 s3, s3, 2")
    A(f"s_lshr_b32 s{S_T0}, s2, 3")
    A(f"s_and_b32 s{S_T1}, s{S_T0}, 3")
    A(f"s_add_u32 s{S_RT}, s3, s{S_T1}")
    A(f"s_lshr_b32 s{S_CT}, s2, 5")
    A("v_lshrrev_b32 v1, 6, v0")
    A("v_and_b32 v2, 63, v0")
    A("s_nop 0")
    A(f"v_readfirstlane_b32 s{S_W}, v1")
    A("v_lshrrev_b32 v3, 4, v2")
    A("v_and_b32 v4, 15, v2")
    A("s_waitcnt lgkmcnt(0)")
    srd(A, SO, 40, 41, 2048 * 640 * 2)
    srd(A, SB2, 38, 39, 1280)
    A(f"s_add_u32 s44, s42, {WS_OMG}")
    A("s_addc_u32 s45, s43, 0")
    srd(A, SOM, 44, 45, 8192)
    A(f"s_cmp_eq_u32 s{S_W}, 3")
    A("s_cbranch_scc1 K3_SET_ATT")
    A(f"s_add_u32 s44, s42, {WS_H}")
    A("s_addc_u32 s45, s43, 0")
    srd(A, SA, 44, 45, 2048 * 1728 * 2)
    A(f"s_add_u32 s44, s42, {WS_W2B}")
    A("s_addc_u32 s45, s43, 0")
    srd(A, SB_, 44, 45, 1728 * 640 * 2)
    A(f"s_mul_i32 s{S_AOFF}, s{S_RT}, 54")
    A(f"s_mul_i32 s{S_BOFF}, s{S_CT}, 54")
    A(f"s_mul_i32 s{S_T0}, s{S_W}, 18")
    A(f"s_add_u32 s{S_AOFF}, s{S_AOFF}, s{S_T0}")
    A(f"s_add_u32 s{S_BOFF}, s{S_BOFF}, s{S_T0}")
    A("s_branch K3_SET_DONE")
    A.label("K3_SET_ATT")
    A(f"s_add_u32 s44, s42, {WS_PQS}")
    A("s_addc_u32 s45, s43, 0")
    srd(A, SA, 44, 45, 2048 * 640 * 2)
    A(f"s_add_u32 s44, s42, {WS_M}")
    A("s_addc_u32 s45, s43, 0")
    srd(A, SB_, 44, 45, 640 * 640 * 2)
    A(f"s_mul_i32 s{S_AOFF}, s{S_RT}, 20")
    A(f"s_mul_i32 s{S_BOFF}, s{S_CT}, 20")
    A.label("K3_SET_DONE")
    A(f"s_lshl_b32 s{S_AOFF}, s{S_AOFF}, 12")
    A(f"s_mul_i32 s{S_BOFF}, s{S_BOFF}, 5120")
    A(f"s_mul_i32 s{S_LB}, s{S_W}, {4*K3_SLOT}")
    A(f"s_lshl_b32 s{S_T0}, s{S_RT}, 6")
    A(f"s_lshl_b32 s{S_T1}, s{S_W}, 4")
    A(f"s_add_u32 s{S_T0}, s{S_T0}, s{S_T1}")
    A(f"v_add_u32 v5, s{S_T0}, v4")
    A("v_lshlrev_b32 v1, 2, v5")
    A(f"buffer_load_dword v110, v1, s[{SOM}:{SOM+3}], 0 offen")
    A(f"s_mul_i32 s{S_T1}, s{S_CT}, 160")
    A("v_lshlrev_b32 v1, 3, v3")
    A(f"v_add_u32 v1, s{S_T1}, v1")
    for j in range(5):
        A(f"buffer_load_dwordx2 v[{112+2*j}:{113+2*j}], v1, s[{SB2}:{SB2+3}], 0 offen offset:{32*j}")
    A("v_mul_u32_u24 v111, 1280, v5")
    A("v_add_u32 v111, v111, v1")
    VAO, VBO = 6, 7
    A("v_lshlrev_b32 v6, 4, v2")
    A("v_add_u32 v7, 4096, v6")
    A("v_lshrrev_b32 v1, 2, v4")
    A("v_sub_u32 v18, 0, v1")
    A("v_and_b32 v18, 3, v18")
    A("v_xor_b32 v18, v18, v3")
    A("v_lshlrev_b32 v18, 4, v18")
    A("v_lshlrev_b32 v15, 6, v4")
    A("v_add_u32 v15, v15, v18")
    A(f"v_add_u32 v15, s{S_LB}, v15")
    A("v_lshlrev_b32 v18, 3, v3")
    A("v_add_u32 v18, v18, v1")
    A("v_and_b32 v19, 1, v3")
    A("v_lshlrev_b32 v19, 2, v19")
    A("v_add_u32 v20, v18, v19")
    A("v_xor_b32 v19, 4, v19")
    A("v_add_u32 v21, v18, v19")
    A("v_and_b32 v19, 3, v2")
    A("v_lshlrev_b32 v19, 3, v19")
    A(f"s_add_u32 s{S_T0}, s{S_LB}, 4096")
    A("v_mul_u32_u24 v16, 160, v20")
    A("v_add_u32 v16, v16, v19")
    A(f"v_add_u32 v16, s{S_T0}, v16")
    A("v_mul_u32_u24 v17, 160, v21")
    A("v_add_u32 v17, v17, v19")
    A(f"v_add_u32 v17, s{S_T0}, v17")
    FR = [22, 58]
    ACC = 128
    def acc(mt, j):
        return ACC + 4 * (mt * 5 + j)
    for i in range(80):
        A(f"v_mov_b32 v{ACC+i}, 0")

    S_N, S_T, S_DS, S_RS3 = 50, 51, 52, 53
    S_MB = 54
    def dma_instr(i):
        if i < 4:
            return f"buffer_load_dwordx4 v6, s[{SA}:{SA+3}], s{S_AOFF} offen offset:{1024*i} lds"
        if i < 8:
            return f"buffer_load_dwordx4 v6, s[{SB_}:{SB_+3}], s{S_BOFF} offen offset:{1024*(i-4)} lds"
        return f"buffer_load_dwordx4 v7, s[{SB_}:{SB_+3}], s{S_BOFF} offen lds"
    def m0_of(i):
        return S_M0 + (0 if i < 4 else (1 if i < 8 else 2))
    def adv():
        A(f"s_add_u32 s{S_AOFF}, s{S_AOFF}, 4096")
        A(f"s_add_u32 s{S_BOFF}, s{S_BOFF}, 5120")
        A(f"s_add_u32 s{S_DS}, s{S_DS}, {K3_SLOT}")
        A(f"s_cmp_eq_u32 s{S_DS}, {4*K3_SLOT}")
        A(f"s_cselect_b32 s{S_DS}, 0, s{S_DS}")
        A(f"s_add_u32 s{S_M0}, s{S_LB}, s{S_DS}")
        A(f"s_add_u32 s{S_M0+1}, s{S_M0}, 4096")
        A(f"s_add_u32 s{S_M0+2}, s{S_M0}, 8192")
    S_M0 = 88
    def reads(fs):
        out = []
        for mt in range(4):
            out.append(f"ds_read_b128 v[{fs+4*mt}:{fs+4*mt+3}], v15 offset:{mt*1024}")
        for j in range(5):
            for hh in range(2):
                r = fs + 16 + 4 * j + 2 * hh
                out.append(f"ds_read_b64_tr_b16 v[{r}:{r+1}], v{16+hh} offset:{32*j}")
        return out
    def mfmas(fs):
        mf = []
        for j in range(5):
            for mt in range(4):
                x = f"v[{fs+4*mt}:{fs+4*mt+3}]"
                w = f"v[{fs+16+4*j}:{fs+16+4*j+3}]"
                a = f"v[{acc(mt,j)}:{acc(mt,j)+3}]"
                mf.append(f"v_mfma_f32_16x16x32_bf16 {a}, {w}, {x}, {a}")
        return mf
    def adv_read():
        A(f"s_add_u32 s{S_RS3}, s{S_RS3}, 1")
        A(f"s_cmp_eq_u32 s{S_RS3}, 4")
        A(f"s_cselect_b32 s{S_RS3}, 0, s{S_RS3}")
        A(f"s_mov_b32 s{S_T0}, {K3_SLOT}")
        A(f"s_cselect_b32 s{S_T0}, {(-3*K3_SLOT) & 0xffffffff}, s{S_T0}")
        for r in (15, 16, 17):
            A(f"v_add_u32 v{r}, s{S_T0}, v{r}")
    A(f"s_cmp_eq_u32 s{S_W}, 3")
    A(f"s_cselect_b32 s{S_N}, 20, 18")
    A(f"s_mov_b32 s{S_DS}, {3*K3_SLOT}")
    A(f"s_sub_u32 s{S_AOFF}, s{S_AOFF}, 4096")
    A(f"s_sub_u32 s{S_BOFF}, s{S_BOFF}, 5120")
    A(f"s_mov_b32 s{S_RS3}, 0")
    A.stamp(1)
    for t in range(4):
        adv()
        for d in range(9):
            if d in (0, 4, 8):
                A(f"s_mov_b32 m0, s{m0_of(d)}")
                A("s_nop 0")
            A(dma_instr(d))
    A("s_waitcnt vmcnt(27)")
    A.stamp(2)
    for r in reads(FR[0]):
        A(r)
    A(f"s_mov_b32 s{S_T}, 0")
    A.label("K3_LOOP")
    for par in range(2):
        fs, fn = FR[par], FR[par ^ 1]
        A("s_waitcnt lgkmcnt(0)")
        A(f"s_add_u32 s{S_T1}, s{S_T}, 4")
        A(f"s_cmp_lt_u32 s{S_T1}, s{S_N}")
        A(f"s_cbranch_scc0 K3_TAIL{par}")
        adv()
        adv_read()
        A(f"s_waitcnt vmcnt({18 + (0)})")
        A(f"s_cmp_eq_u32 s{S_T}, s{S_T}")
        A(f"s_branch K3_BODY{par}")
        A.label(f"K3_TAIL{par}")
        A(f"s_add_u32 s{S_T1}, s{S_T}, 1")
        A(f"s_cmp_ge_u32 s{S_T1}, s{S_N}")
        A(f"s_cbranch_scc1 K3_FIN{par}")
        adv_read()
        A("s_waitcnt vmcnt(0)")
        A(f"s_cmp_lg_u32 s{S_T}, s{S_T}")
        A.label(f"K3_BODY{par}")
        rd = reads(fn)
        k = 0
        d = 0
        for i, m in enumerate(mfmas(fs)):
            A(m)
            if k < len(rd):
                A(rd[k]); k += 1
            if i % 2 == 1 and d < 9:
                A(f"s_cbranch_scc0 K3_SK{par}_{d}")
                if d in (0, 4, 8):
                    A(f"s_mov_b32 m0, s{m0_of(d)}")
                    A("s_nop 0")
                A(dma_instr(d))
                A.label(f"K3_SK{par}_{d}")
                d += 1
        A(f"s_add_u32 s{S_T}, s{S_T}, 1")
    A("s_branch K3_LOOP")
    A.label("K3_FIN0")
    for m in mfmas(FR[0]):
        A(m)
    A("s_branch K3_DONE")
    A.label("K3_FIN1")
    for m in mfmas(FR[1]):
        A(m)
    A.label("K3_DONE")
    A("s_nop 7")
    A("s_nop 7")
    A.stamp(7)
    A("s_barrier")
    A.stamp(8)
    A(f"s_mul_i32 s{S_T0}, s{S_W}, 20480")
    A("v_lshlrev_b32 v1, 4, v2")
    A(f"v_add_u32 v5, s{S_T0}, v1")
    for i in range(20):
        A(f"ds_write_b128 v5, v[{ACC+4*i}:{ACC+4*i+3}] offset:{1024*i}")
    A("s_waitcnt lgkmcnt(0)")
    A("s_barrier")
    A(f"s_mul_i32 s{S_T0}, s{S_W}, 5120")
    A(f"v_add_u32 v5, s{S_T0}, v1")
    A("v_add_u32 v6, 40960, v5")
    for j in range(5):
        A(f"ds_read_b128 v[{22+16*j}:{25+16*j}], v5 offset:{1024*j}")
        A(f"ds_read_b128 v[{26+16*j}:{29+16*j}], v5 offset:{20480+1024*j}")
        A(f"ds_read_b128 v[{30+16*j}:{33+16*j}], v6 offset:{1024*j}")
        A(f"ds_read_b128 v[{34+16*j}:{37+16*j}], v6 offset:{20480+1024*j}")
    A("s_waitcnt vmcnt(0) lgkmcnt(0)")
    for j in range(5):
        b = 22 + 16 * j
        for r in range(4):
            A(f"v_add_f32 v{b+r}, v{b+r}, v{b+4+r}")
        for r in range(4):
            A(f"v_add_f32 v{b+r}, v{b+r}, v{b+8+r}")
        A(f"v_lshlrev_b32 v{b+4}, 16, v{112+2*j}")
        A(f"v_and_b32 v{b+5}, 0xffff0000, v{112+2*j}")
        A(f"v_lshlrev_b32 v{b+6}, 16, v{113+2*j}")
        A(f"v_and_b32 v{b+7}, 0xffff0000, v{113+2*j}")
        for r in range(4):
            A(f"v_add_f32 v{b+r}, v{b+r}, v{b+4+r}")
        for r in range(4):
            A(f"v_fma_f32 v{b+r}, v{b+r}, v110, v{b+12+r}")
        A(f"v_cvt_pk_bf16_f32 v{b+8}, v{b}, v{b+1}")
        A(f"v_cvt_pk_bf16_f32 v{b+9}, v{b+2}, v{b+3}")
        A(f"buffer_store_dwordx2 v[{b+8}:{b+9}], v111, s[{SO}:{SO+3}], 0 offen offset:{32*j}")
    A.label("K3_END")
    A.stamp(9)
    A.stamp_flush(2, 42, 43)
    A.label("K3_EXIT")
    A("s_endpgm")
    kd(A, name, 256 if STAMP else 208)

def main():
    A = Asm()
    hdr = open(f"cdna_kernels/{NAME}.s.ref").read().splitlines()
    for l in hdr:
        if l.startswith("; @launch"):
            break
        A.raw(l)
    A.raw(f"; @launch kernel=k1_gemm_kernel grid=(256,1,1) block=(512,1,1) lds={K1_LDS}")
    A.raw(f"; @launch kernel=k2_small_kernel grid=(256,1,1) block=(256,1,1) lds={K2_LDS}")
    A.raw(f"; @launch kernel={NAME}_kernel grid=(256,1,1) block=(256,1,1) lds={K3_LDS}")
    A.raw('.amdgcn_target "amdgcn-amd-amdhsa--gfx950"')
    A.raw(".text")
    gen_k1(A)
    gen_k2(A)
    gen_k3(A)
    out = sys.argv[1] if len(sys.argv) > 1 else f"cdna_kernels/{NAME}.s"
    open(out, "w").write("\n".join(A.lines) + "\n")

main()
```

```python
import sys

NAME = "gated_mix__linear_attn_block__dense_activation_gelu__prompt"

WS_H = 0
WS_PQ = 0x6C0000
WS_PQS = 0x940000
WS_M = 0xBC0000
WS_OMG = 0xC88000
WS_KVP = 0xC8A000
WS_W2B = 0xD20000
KVC_RT = 53760
KVP_BYTES = 11 * KVC_RT

LOG2E = 0x3FB8AA3B
def f32(x):
    import struct
    return struct.unpack("<I", struct.pack("<f", x))[0]

import os
STAMP = int(os.environ.get("STAMP", "0"))
WS_DBG = 0x1000000
class Asm:
    def __init__(self):
        self.lines = []
        self.nst = 0
    def stamp(self, i):
        if STAMP:
            self(f"s_memtime s[{60+2*i}:{61+2*i}]")
    def stamp_flush(self, kidx, ws_lo, ws_hi, va=250):
        if not STAMP:
            return
        n = 12
        self("s_getreg_b32 s82, hwreg(HW_REG_XCC_ID)")
        self("s_waitcnt lgkmcnt(0)")
        self(f"s_add_u32 s88, s{ws_lo}, {WS_DBG + kidx*0x40000}")
        self(f"s_addc_u32 s89, s{ws_hi}, 0")
        self("s_mov_b32 s92, s88")
        self("s_and_b32 s93, s89, 0xffff")
        self("s_mov_b32 s94, 0x40000")
        self("s_mov_b32 s95, 0x00020000")
        self(f"v_lshrrev_b32 v{va}, 6, v0")
        self("s_lshl_b32 s88, s2, 4")
        self(f"v_add_u32 v{va}, s88, v{va}")
        self(f"v_lshlrev_b32 v{va}, 6, v{va}")
        for i in range(n):
            self(f"v_mov_b32 v{va+1}, s{60+2*i}")
            self(f"buffer_store_dword v{va+1}, v{va}, s[92:95], 0 offen offset:{4*i}")
        self.nst = 0
    def __call__(self, s):
        self.lines.append("    " + s)
    def label(self, l):
        self.lines.append(l + ":")
    def raw(self, s):
        self.lines.append(s)

def vr(a, n=1):
    return f"v{a}" if n == 1 else f"v[{a}:{a+n-1}]"
def sr(a, n=1):
    return f"s{a}" if n == 1 else f"s[{a}:{a+n-1}]"

def srd(A, d, lo, hi, nbytes):
    A(f"s_mov_b32 s{d}, s{lo}")
    A(f"s_and_b32 s{d+1}, s{hi}, 0xffff")
    A(f"s_mov_b32 s{d+2}, {nbytes}")
    A(f"s_mov_b32 s{d+3}, 0x00020000")

def kd(A, name, vgpr, sgpr=102):
    A.raw('.section .rodata,"a"')
    A.raw(".p2align 6")
    A.raw(f".amdhsa_kernel {name}")
    acc = (vgpr + 3) // 4 * 4
    A.raw(f"  .amdhsa_next_free_vgpr {vgpr}")
    A.raw(f"  .amdhsa_next_free_sgpr {sgpr}")
    A.raw(f"  .amdhsa_accum_offset {acc}")
    A.raw("  .amdhsa_group_segment_fixed_size 0")
    A.raw("  .amdhsa_kernarg_size 96")
    A.raw("  .amdhsa_user_sgpr_count 2")
    A.raw("  .amdhsa_user_sgpr_kernarg_segment_ptr 1")
    A.raw("  .amdhsa_system_sgpr_workgroup_id_x 1")
    A.raw(".end_amdhsa_kernel")
    A.raw(".text")

def khead(A, name):
    A.raw(f".globl {name}")
    A.raw(".p2align 8")
    A.raw(f".type {name},@function")
    A.label(name)

K1_SLOT = 45056
K1_WOFF = 24576
K1_LDS = 3 * K1_SLOT

def gen_k1(A):
    name = "k1_gemm_kernel"
    khead(A, name)
    S_RT, S_CT, S_W = 4, 5, 7
    SX, SW, SO, SB = 8, 12, 16, 20
    S_XOFF, S_WOFF, S_WSTR = 24, 25, 26
    S_MX = 27
    S_MW = 30
    S_RS = 33
    S_CB = 46
    S_T0, S_T1, S_T2 = 47, 48, 49
    S_TYPE = 50
    S_C1, S_C2, S_C3 = 51, 52, 53
    A.stamp(0)
    A("s_cmp_ge_u32 s2, 256")
    A("s_cbranch_scc1 K1_EXIT")
    A("s_and_b32 s3, s2, 7")
    A("s_lshl_b32 s3, s3, 5")
    A(f"s_lshr_b32 s{S_T0}, s2, 3")
    A(f"s_add_u32 s3, s3, s{S_T0}")
    A("s_cmp_ge_u32 s3, 253")
    A("s_cbranch_scc1 K1_EXIT")
    A("s_load_dwordx4 s[36:39], s[0:1], 0")
    A("s_load_dwordx4 s[40:43], s[0:1], 32")
    A("s_load_dwordx2 s[44:45], s[0:1], 88")
    A("s_cmp_lt_u32 s3, 138")
    A("s_cbranch_scc0 K1_MAPB")
    A(f"s_mul_i32 s{S_CT}, s3, 171")
    A(f"s_lshr_b32 s{S_CT}, s{S_CT}, 10")
    A(f"s_mul_i32 s{S_T0}, s{S_CT}, 6")
    A(f"s_sub_u32 s{S_RT}, s3, s{S_T0}")
    A("s_branch K1_MAPD")
    A.label("K1_MAPB")
    A("s_sub_u32 s3, s3, 138")
    A(f"s_mul_i32 s{S_CT}, s3, 205")
    A(f"s_lshr_b32 s{S_CT}, s{S_CT}, 10")
    A(f"s_mul_i32 s{S_T0}, s{S_CT}, 5")
    A(f"s_sub_u32 s{S_RT}, s3, s{S_T0}")
    A(f"s_add_u32 s{S_RT}, s{S_RT}, 6")
    A.label("K1_MAPD")
    A("v_lshrrev_b32 v1, 6, v0")
    A("v_and_b32 v2, 63, v0")
    A("s_nop 0")
    A(f"v_readfirstlane_b32 s{S_W}, v1")
    A("v_lshrrev_b32 v3, 4, v2")
    A("v_and_b32 v4, 15, v2")
    A("s_waitcnt lgkmcnt(0)")
    srd(A, SX, 36, 37, 2048 * 640 * 2)
    A(f"s_cmp_lt_u32 s{S_CT}, 8")
    A("s_cbranch_scc1 K1_SET_KV")
    A(f"s_cmp_lt_u32 s{S_CT}, 12")
    A("s_cbranch_scc1 K1_SET_Q")
    A(f"s_mov_b32 s{S_TYPE}, 2")
    srd(A, SW, 40, 41, 640 * 1728 * 2)
    A(f"s_mov_b32 s{S_RS}, 3456")
    A(f"s_sub_u32 s{S_T0}, s{S_CT}, 12")
    A(f"s_mul_i32 s{S_CB}, s{S_T0}, 320")
    A(f"s_add_u32 s{S_T1}, s44, {WS_H}")
    A(f"s_addc_u32 s{S_T2}, s45, 0")
    srd(A, SO, S_T1, S_T2, 2048 * 1728 * 2)
    A("s_branch K1_SET_DONE")
    A.label("K1_SET_Q")
    A(f"s_mov_b32 s{S_TYPE}, 1")
    srd(A, SW, 38, 39, 640 * 1920 * 2)
    A(f"s_mov_b32 s{S_RS}, 3840")
    A(f"s_sub_u32 s{S_T0}, s{S_CT}, 8")
    A(f"s_mul_i32 s{S_CB}, s{S_T0}, 320")
    A(f"s_add_u32 s{S_T1}, s44, {WS_PQ}")
    A(f"s_addc_u32 s{S_T2}, s45, 0")
    srd(A, SO, S_T1, S_T2, 2048 * 640 * 2)
    A("s_branch K1_SET_DONE")
    A.label("K1_SET_KV")
    A(f"s_mov_b32 s{S_TYPE}, 0")
    srd(A, SW, 38, 39, 640 * 1920 * 2)
    A(f"s_mov_b32 s{S_RS}, 3840")
    A(f"s_mul_i32 s{S_CB}, s{S_CT}, 160")
    A(f"s_add_u32 s{S_T1}, s44, {WS_KVP}")
    A(f"s_addc_u32 s{S_T2}, s45, 0")
    srd(A, SO, S_T1, S_T2, KVP_BYTES)
    A.label("K1_SET_DONE")
    srd(A, SB, 42, 43, 1728 * 2)
    A(f"s_lshl_b32 s{S_WSTR}, s{S_RS}, 6")
    A(f"s_mov_b32 s{S_XOFF}, 0")
    A(f"s_mov_b32 s{S_WOFF}, 0")
    A(f"s_mul_i32 s{S_MX}, s{S_W}, 3072")
    A(f"s_add_u32 s{S_MX+1}, s{S_MX}, 1024")
    A(f"s_add_u32 s{S_MX+2}, s{S_MX}, 2048")
    A(f"s_lshl_b32 s{S_MW}, s{S_W}, 10")
    A(f"s_add_u32 s{S_MW}, s{S_MW}, {K1_WOFF}")
    A(f"s_add_u32 s{S_MW+1}, s{S_MW}, 8192")
    A(f"s_add_u32 s{S_T0}, s{S_MW}, 16384")
    A(f"s_cmp_lt_u32 s{S_W}, 4")
    A(f"s_cselect_b32 s{S_MW+2}, s{S_T0}, s{S_MW+1}")
    VXO, VWO = 6, 9
    A(f"s_mul_i32 s{S_T0}, s{S_W}, 24")
    A(f"s_mul_i32 s{S_T1}, s{S_RT}, 192")
    A(f"s_add_u32 s{S_T0}, s{S_T0}, s{S_T1}")
    A("v_lshrrev_b32 v1, 3, v2")
    A("v_and_b32 v5, 7, v2")
    A("v_xor_b32 v5, v5, v1")
    A("v_lshlrev_b32 v5, 4, v5")
    A(f"v_add_u32 v1, s{S_T0}, v1")
    A(f"s_movk_i32 s{S_T1}, 1280")
    A(f"v_mul_lo_u32 v1, v1, s{S_T1}")
    A(f"v_add_u32 v{VXO}, v1, v5")
    A(f"v_add_u32 v{VXO+1}, {8*1280}, v{VXO}")
    A(f"v_add_u32 v{VXO+2}, {16*1280}, v{VXO}")
    for i in range(3):
        if i == 0:
            A(f"s_mov_b32 s{S_T0}, s{S_W}")
        elif i == 1:
            A(f"s_add_u32 s{S_T0}, s{S_W}, 8")
        else:
            A(f"s_add_u32 s{S_T0}, s{S_W}, 16")
            A(f"s_add_u32 s{S_T1}, s{S_W}, 8")
            A(f"s_cmp_lt_u32 s{S_W}, 4")
            A(f"s_cselect_b32 s{S_T0}, s{S_T0}, s{S_T1}")
        A(f"s_lshl_b32 s{S_T0}, s{S_T0}, 6")
        A(f"v_add_u32 v1, s{S_T0}, v2")
        A(f"s_movk_i32 s{S_T1}, 3277")
        A(f"v_mul_lo_u32 v5, v1, s{S_T1}")
        A("v_lshrrev_b32 v5, 16, v5")
        A("v_mul_u32_u24 v12, 20, v5")
        A("v_sub_u32 v12, v1, v12")
        A("v_lshrrev_b32 v13, 3, v5")
        A("v_and_b32 v13, 1, v13")
        A("v_lshlrev_b32 v13, 1, v13")
        A("v_xor_b32 v12, v12, v13")
        A(f"v_mul_lo_u32 v5, v5, s{S_RS}")
        A("v_lshlrev_b32 v13, 4, v12")
        A(f"v_add_u32 v5, v5, v13")
        A(f"v_add_u32 v5, s{S_CB}, v5")
        A(f"s_cmp_lg_u32 s{S_TYPE}, 0")
        A(f"s_cbranch_scc1 K1_WOFF_DONE{i}")
        A("v_cmp_le_u32 vcc, 10, v12")
        A("v_mov_b32 v13, 0")
        A("v_mov_b32 v14, 10")
        A("v_cndmask_b32 v13, v13, v14, vcc")
        A("v_sub_u32 v14, v12, v13")
        A("v_lshlrev_b32 v13, 3, v13")
        A("v_sub_u32 v5, v5, v13")
        A("v_cmp_le_u32 vcc, 5, v14")
        A("v_mov_b32 v13, 1280")
        A("v_mov_b32 v14, 2480")
        A("v_cndmask_b32 v13, v13, v14, vcc")
        A("v_add_u32 v5, v5, v13")
        A.label(f"K1_WOFF_DONE{i}")
        A(f"v_mov_b32 v{VWO+i}, v5")
    VB = 12
    A(f"s_and_b32 s{S_T0}, s{S_W}, 3")
    A(f"s_lshr_b32 s{S_T1}, s{S_W}, 2")
    A(f"s_mul_i32 s{S_T2}, s{S_T0}, 48")
    A(f"v_add_u32 v1, s{S_T2}, v4")
    A("v_lshlrev_b32 v1, 7, v1")
    A("v_and_b32 v5, 7, v2")
    A("v_xor_b32 v24, v3, v5")
    A("v_lshlrev_b32 v24, 4, v24")
    A(f"v_add_u32 v{VB}, v1, v24")
    A(f"v_xor_b32 v{VB+1}, 64, v{VB}")
    A("v_lshlrev_b32 v1, 3, v3")
    A("v_lshrrev_b32 v5, 2, v4")
    A("v_add_u32 v1, v1, v5")
    A("v_mul_u32_u24 v1, 320, v1")
    A("v_and_b32 v5, 3, v2")
    A("v_lshlrev_b32 v5, 3, v5")
    A("v_add_u32 v1, v1, v5")
    A(f"s_mul_i32 s{S_T2}, s{S_T1}, 160")
    A(f"v_add_u32 v1, s{S_T2}, v1")
    A("v_and_b32 v5, 1, v3")
    A("v_lshlrev_b32 v5, 5, v5")
    A("v_add_u32 v24, v1, v5")
    A("v_sub_u32 v25, v1, v5")
    A(f"s_cmp_eq_u32 s{S_T1}, 0")
    A("s_cbranch_scc1 K1_NH0")
    A(f"v_mov_b32 v{VB+2}, v25")
    A(f"v_mov_b32 v{VB+3}, v24")
    A("s_branch K1_NHD")
    A.label("K1_NH0")
    A(f"v_mov_b32 v{VB+2}, v24")
    A(f"v_mov_b32 v{VB+3}, v25")
    A.label("K1_NHD")
    VB1 = 148
    A(f"s_cmp_lg_u32 s{S_TYPE}, 2")
    A("s_cbranch_scc1 K1_NOB1")
    A(f"s_mul_i32 s{S_T2}, s{S_T1}, 160")
    A(f"s_add_u32 s{S_T2}, s{S_T2}, s{S_CB}")
    A("v_lshlrev_b32 v1, 3, v3")
    A(f"v_add_u32 v1, s{S_T2}, v1")
    for j in range(5):
        A(f"buffer_load_dwordx2 v[{VB1+2*j}:{VB1+2*j+1}], v1, s[{SB}:{SB+3}], 0 offen offset:{32*j}")
    A.label("K1_NOB1")

    FR = [24, 56]
    ACC = 88
    def acc(mt, j):
        return ACC + 4 * (mt * 5 + j)
    for i in range(60):
        A(f"v_mov_b32 v{ACC+i}, 0")

    S_M = 60 if not STAMP else 86
    S_S, S_DS, S_DD, S_RD = 54, 55, 58, 59
    S_M0 = 96
    VX0, VX1, VW0, VW1 = VB, VB + 1, VB + 2, VB + 3

    def dma_instr(i):
        if i < 3:
            return f"buffer_load_dwordx4 v{VXO+i}, s[{SX}:{SX+3}], s{S_XOFF} offen lds"
        return f"buffer_load_dwordx4 v{VWO+i-3}, s[{SW}:{SW+3}], s{S_WOFF} offen lds"

    def set_m0s():
        for i in range(3):
            A(f"s_add_u32 s{S_M0+i}, s{S_MX+i}, s{S_DS}")
            A(f"s_add_u32 s{S_M0+3+i}, s{S_MW+i}, s{S_DS}")

    def adv_group():
        A(f"s_add_u32 s{S_XOFF}, s{S_XOFF}, 128")
        A(f"s_add_u32 s{S_WOFF}, s{S_WOFF}, s{S_WSTR}")
        A(f"s_add_u32 s{S_DS}, s{S_DS}, {K1_SLOT}")
        A(f"s_cmp_eq_u32 s{S_DS}, {3*K1_SLOT}")
        A(f"s_cselect_b32 s{S_DS}, 0, s{S_DS}")

    def frag_reads(ks):
        fs = FR[ks ^ 1] if False else None
        return None

    def reads(ks, fs):
        out = []
        for mt in range(3):
            out.append(f"ds_read_b128 v[{fs+4*mt}:{fs+4*mt+3}], v{VB+ks} offset:{mt*2048}")
        for j in range(5):
            for hh in range(2):
                off = K1_WOFF + (32 * ks + 4 * hh) * 320 + 32 * j
                r = fs + 12 + 4 * j + 2 * hh
                out.append(f"ds_read_b64_tr_b16 v[{r}:{r+1}], v{VB+2+(j&1)} offset:{off}")
        return out

    def mfmas(fs, swapped):
        mf = []
        for j in range(5):
            for mt in range(3):
                x = f"v[{fs+4*mt}:{fs+4*mt+3}]"
                w = f"v[{fs+12+4*j}:{fs+12+4*j+3}]"
                a = f"v[{acc(mt,j)}:{acc(mt,j)+3}]"
                mf.append(f"v_mfma_f32_16x16x32_bf16 {a}, {w}, {x}, {a}" if swapped else f"v_mfma_f32_16x16x32_bf16 {a}, {x}, {w}, {a}")
        return mf

    def phase(mf, rd, dmas, tag):
        k = 0
        dpos = {2: 0, 7: 1, 12: 2}
        for i, m in enumerate(mf):
            A(m)
            if k < len(rd):
                A(rd[k]); k += 1
            if i in dpos and dmas:
                d = dmas[dpos[i]]
                A(f"s_cbranch_scc0 {tag}_{d}")
                A(f"s_mov_b32 m0, s{S_M0+d}")
                A("s_nop 0")
                A(dma_instr(d))
                A.label(f"{tag}_{d}")
        while k < len(rd):
            A(rd[k]); k += 1

    def mainloop(swapped, tag):
        A(f"s_mov_b32 s{S_DS}, 0")
        A.stamp(1)
        for g in range(3):
            set_m0s()
            for d in range(6 if g < 2 else 3):
                A(f"s_mov_b32 m0, s{S_M0+d}")
                A("s_nop 0")
                A(dma_instr(d))
            if g < 2:
                adv_group()
        A("s_waitcnt vmcnt(9)")
        A.stamp(2)
        A("s_barrier")
        A.stamp(3)
        for r in reads(0, FR[0]):
            A(r)
        A(f"s_mov_b32 s{S_S}, 0")
        A.label(f"K1_LOOP_{tag}")
        if STAMP:
            for q in (2, 4, 6, 8):
                A(f"s_cmp_lg_u32 s{S_S}, {q}")
                A(f"s_cbranch_scc1 K1_ST{tag}{q}")
                A.stamp(3 + q // 2)
                A.label(f"K1_ST{tag}{q}")
        A("s_waitcnt lgkmcnt(0)")
        A(f"s_cmp_lt_u32 s{S_S}, 8")
        phase(mfmas(FR[0], swapped), reads(1, FR[1]), [3, 4, 5], f"K1A{tag}")
        A(f"s_cbranch_scc0 K1_NOADV_{tag}")
        adv_group()
        set_m0s()
        A.label(f"K1_NOADV_{tag}")
        A("s_waitcnt lgkmcnt(0)")
        A(f"s_cmp_eq_u32 s{S_S}, 9")
        A(f"s_cbranch_scc1 K1_LAST_{tag}")
        A(f"s_cmp_lt_u32 s{S_S}, 8")
        A(f"s_cbranch_scc1 K1_W6_{tag}")
        A("s_waitcnt vmcnt(0)")
        A.label(f"K1_W6_{tag}")
        A("s_waitcnt vmcnt(6)")
        A("s_barrier")
        A(f"s_add_u32 s{S_RD}, s{S_RD}, 1")
        A(f"s_cmp_eq_u32 s{S_RD}, 3")
        A(f"s_cselect_b32 s{S_RD}, 0, s{S_RD}")
        A(f"s_mov_b32 s{S_T0}, {K1_SLOT}")
        A(f"s_cselect_b32 s{S_T0}, {(-2*K1_SLOT) & 0xffffffff}, s{S_T0}")
        for i in range(4):
            A(f"v_add_u32 v{VB+i}, s{S_T0}, v{VB+i}")
        A(f"s_cmp_lt_u32 s{S_S}, 7")
        phase(mfmas(FR[1], swapped), reads(0, FR[0]), [0, 1, 2], f"K1B{tag}")
        A(f"s_add_u32 s{S_S}, s{S_S}, 1")
        A(f"s_branch K1_LOOP_{tag}")
        A.label(f"K1_LAST_{tag}")
        for m in mfmas(FR[1], swapped):
            A(m)
        A("s_nop 7")
        A("s_nop 7")
        A.stamp(8)

    A(f"s_mov_b32 s{S_RD}, 0")
    A(f"s_cmp_eq_u32 s{S_TYPE}, 0")
    A("s_cbranch_scc1 K1_KV")
    mainloop(True, "qh")
    A("s_barrier")
    A(f"s_and_b32 s{S_T0}, s{S_W}, 3")
    A(f"s_lshr_b32 s{S_T1}, s{S_W}, 2")
    S_MW_, S_NH_, S_IT, S_CP = 54, 55, 58, 96
    A(f"s_mov_b32 s{S_MW_}, s{S_T0}")
    A(f"s_mov_b32 s{S_NH_}, s{S_T1}")
    A(f"s_mov_b32 s{S_IT}, 0")
    T = 24
    A(f"s_cmp_eq_u32 s{S_TYPE}, 2")
    A("s_cbranch_scc1 K1_EPI_H")
    A(f"s_mul_i32 s{S_T2}, s{S_T0}, 48")
    A(f"v_add_u32 v1, s{S_T2}, v4")
    A("v_mul_u32_u24 v1, 336, v1")
    A(f"s_mul_i32 s{S_T2}, s{S_T1}, 160")
    A("v_lshlrev_b32 v5, 3, v3")
    A("v_add_u32 v1, v1, v5")
    A(f"v_add_u32 v1, s{S_T2}, v1")
    A(f"s_mov_b32 s96, {LOG2E}")
    A(f"s_mov_b32 s97, {LOG2E}")
    A(f"s_mov_b32 s98, {f32(1e-6)}")
    A(f"s_mov_b32 s99, {f32(1e-6)}")
    def phi_block(a0, n, T):
        for r in range(n):
            A(f"v_min_f32 v{T+r}, 0, v{a0+r}")
        for r in range(0, n, 2):
            A(f"v_pk_mul_f32 v[{T+r}:{T+r+1}], v[{T+r}:{T+r+1}], s[96:97]")
        for r in range(n):
            A(f"v_exp_f32 v{T+r}, v{T+r}")
        for r in range(n):
            A(f"v_max_f32 v{T+n+r}, 0, v{a0+r}")
        for r in range(0, n, 2):
            A(f"v_pk_add_f32 v[{T+n+r}:{T+n+r+1}], v[{T+n+r}:{T+n+r+1}], s[98:99]")
        for r in range(0, n, 2):
            A(f"v_pk_add_f32 v[{T+r}:{T+r+1}], v[{T+r}:{T+r+1}], v[{T+n+r}:{T+n+r+1}]")
    for mt in range(3):
        phi_block(acc(mt, 0), 20, 24)
        for j in range(5):
            A(f"v_cvt_pk_bf16_f32 v{64+2*j}, v{24+4*j}, v{25+4*j}")
            A(f"v_cvt_pk_bf16_f32 v{65+2*j}, v{26+4*j}, v{27+4*j}")
        for j in range(5):
            A(f"ds_write_b64 v1, v[{64+2*j}:{65+2*j}] offset:{mt*16*336 + 32*j}")
    A("s_waitcnt lgkmcnt(0)")
    A("s_barrier")
    A(f"s_mul_i32 s{S_T2}, s{S_RT}, {192*1280}")
    A(f"s_add_u32 s{S_T2}, s{S_T2}, s{S_CB}")
    for n in range(8):
        if n == 7:
            A(f"s_cmp_ge_u32 s{S_W}, 4")
            A("s_cbranch_scc1 K1_QST")
        A(f"s_add_u32 s{S_T0}, s{S_W}, {8*n}")
        A(f"s_lshl_b32 s{S_T0}, s{S_T0}, 6")
        A(f"v_add_u32 v5, s{S_T0}, v2")
        A("v_mul_u32_u24 v6, 3277, v5")
        A("v_lshrrev_b32 v6, 16, v6")
        A("v_mul_u32_u24 v7, 20, v6")
        A("v_sub_u32 v7, v5, v7")
        A("v_lshlrev_b32 v7, 4, v7")
        A("v_mul_u32_u24 v8, 336, v6")
        A("v_add_u32 v8, v8, v7")
        A(f"ds_read_b128 v[{24+4*n}:{27+4*n}], v8")
        A("v_mul_u32_u24 v6, 1280, v6")
        A(f"v_add_u32 v{72+n}, v6, v7")
    A.label("K1_QST")
    A("s_waitcnt lgkmcnt(0)")
    for n in range(8):
        if n == 7:
            A(f"s_cmp_ge_u32 s{S_W}, 4")
            A("s_cbranch_scc1 K1_END")
        A(f"buffer_store_dwordx4 v[{24+4*n}:{27+4*n}], v{72+n}, s[{SO}:{SO+3}], s{S_T2} offen")
    A("s_branch K1_END")
    A.label("K1_EPI_H")
    c1 = -2.0 * 0.7978845608028654 * 1.4426950408889634
    A(f"s_mov_b32 s{S_C1}, {f32(c1)}")
    A(f"s_mov_b32 s{S_C2}, {f32(c1 * 0.044715)}")
    A(f"v_mov_b32 v8, s{S_C1}")
    for j in range(5):
        A(f"v_lshlrev_b32 v{60+4*j}, 16, v{VB1+2*j}")
        A(f"v_and_b32 v{60+4*j+1}, 0xffff0000, v{VB1+2*j}")
        A(f"v_lshlrev_b32 v{60+4*j+2}, 16, v{VB1+2*j+1}")
        A(f"v_and_b32 v{60+4*j+3}, 0xffff0000, v{VB1+2*j+1}")
    A("v_lshrrev_b32 v5, 2, v4")
    A("v_sub_u32 v5, 0, v5")
    A("v_and_b32 v5, 3, v5")
    A("v_lshrrev_b32 v6, 1, v3")
    A("v_xor_b32 v5, v5, v6")
    A("v_lshlrev_b32 v5, 4, v5")
    A("v_lshlrev_b32 v6, 6, v4")
    A("v_add_u32 v5, v5, v6")
    A("v_and_b32 v6, 1, v3")
    A("v_lshlrev_b32 v6, 3, v6")
    A("v_add_u32 v5, v5, v6")
    A(f"s_lshl_b32 s{S_T2}, s{S_NH_}, 5")
    A(f"v_xor_b32 v6, s{S_T2}, v5")
    A("v_xor_b32 v7, 32, v6")
    for j in range(5):
        A(f"s_mul_i32 s{S_T2}, s{S_NH_}, 80")
        A(f"s_add_u32 s{S_T2}, s{S_T2}, {16*j}")
        A(f"s_lshr_b32 s{S_T2}, s{S_T2}, 5")
        A(f"s_lshl_b32 s{S_CP+j}, s{S_T2}, 12")
    A(f"s_mul_i32 s{S_C3}, s{S_MW_}, 48")
    A(f"s_mov_b32 s90, {f32(c1)}")
    A(f"s_mov_b32 s91, {f32(c1)}")
    A(f"s_mov_b32 s92, {f32(c1 * 0.044715)}")
    A(f"s_mov_b32 s93, {f32(c1 * 0.044715)}")
    A(f"s_mov_b32 s94, {f32(30.0)}")
    A("v_mov_b32 v80, s90")
    A("v_mov_b32 v81, s90")
    A("v_mov_b32 v82, 1.0")
    A("v_mov_b32 v83, 1.0")
    for mt in range(3):
        A(f"s_lshr_b32 s{S_T0}, s{S_C3}, 6")
        A(f"s_mul_i32 s{S_T0}, s{S_T0}, 20480")
        A(f"s_and_b32 s{S_T1}, s{S_C3}, 63")
        A(f"s_lshl_b32 s{S_T1}, s{S_T1}, 6")
        A(f"s_add_u32 s{S_T0}, s{S_T0}, s{S_T1}")
        A(f"v_add_u32 v9, s{S_T0}, v6")
        A(f"v_add_u32 v10, s{S_T0}, v7")
        a0 = acc(mt, 0)
        T = 24
        P = lambda b, r: f"v[{b+r}:{b+r+1}]"
        for r in range(0, 20, 2):
            A(f"v_pk_add_f32 {P(a0,r)}, {P(a0,r)}, {P(60,r)}")
        for r in range(0, 20, 2):
            A(f"v_pk_mul_f32 {P(T,r)}, {P(a0,r)}, {P(a0,r)}")
        for r in range(0, 20, 2):
            A(f"v_pk_fma_f32 {P(T,r)}, {P(T,r)}, s[92:93], v[80:81]")
        for r in range(0, 20, 2):
            A(f"v_pk_mul_f32 {P(T,r)}, {P(T,r)}, {P(a0,r)}")
        for r in range(20):
            A(f"v_min_f32 v{T+r}, 30.0, v{T+r}") if False else A(f"v_min_f32 v{T+r}, s94, v{T+r}")
        for r in range(20):
            A(f"v_exp_f32 v{T+r}, v{T+r}")
        for j in range(5):
            A(f"v_add_u32 v{11+j}, s{S_CP+j}, v{9+(j&1)}")
        for r in range(0, 20, 2):
            A(f"v_pk_add_f32 {P(T,r)}, {P(T,r)}, v[82:83]")
        for j in range(5):
            b = T + 4 * j
            A(f"v_mul_f32 v{44+2*j}, v{b}, v{b+1}")
            A(f"v_mul_f32 v{45+2*j}, v{b+2}, v{b+3}")
        for j in range(5):
            A(f"v_mul_f32 v{54+j}, v{44+2*j}, v{45+2*j}")
        for j in range(5):
            A(f"v_rcp_f32 v{54+j}, v{54+j}")
        A("s_nop 0")
        for j in range(5):
            A(f"v_mul_f32 v{84+(j&1)*2}, v{54+j}, v{45+2*j}")
            A(f"v_mul_f32 v{85+(j&1)*2}, v{54+j}, v{44+2*j}")
            b = T + 4 * j
            q = 84 + (j & 1) * 2
            A(f"v_mul_f32 v{44+2*j}, v{q}, v{b+1}")
            A(f"v_mul_f32 v{45+2*j}, v{q}, v{b}")
            A(f"v_mul_f32 v{b}, v{44+2*j}, v{a0+4*j}")
            A(f"v_mul_f32 v{b+1}, v{45+2*j}, v{a0+4*j+1}")
            A(f"v_mul_f32 v{44+2*j}, v{q+1}, v{b+3}")
            A(f"v_mul_f32 v{45+2*j}, v{q+1}, v{b+2}")
            A(f"v_mul_f32 v{b+2}, v{44+2*j}, v{a0+4*j+2}")
            A(f"v_mul_f32 v{b+3}, v{45+2*j}, v{a0+4*j+3}")
        for j in range(5):
            A(f"v_cvt_pk_bf16_f32 v{44+2*j}, v{T+4*j}, v{T+4*j+1}")
            A(f"v_cvt_pk_bf16_f32 v{45+2*j}, v{T+4*j+2}, v{T+4*j+3}")
        for j in range(5):
            A(f"ds_write_b64 v{11+j}, v[{44+2*j}:{45+2*j}]")
        A(f"s_add_u32 s{S_C3}, s{S_C3}, 16")
    A("s_waitcnt lgkmcnt(0)")
    A.stamp(10)
    A("s_barrier")
    A("v_lshlrev_b32 v1, 4, v2")
    A(f"s_sub_u32 s{S_C1}, s{S_CT}, 12")
    A(f"s_mul_i32 s{S_C1}, s{S_C1}, 5")
    A(f"s_mul_i32 s{S_C2}, s{S_RT}, 3")
    for n in range(8):
        A(f"s_add_u32 s{S_T0}, s{S_W}, {8*n}")
        A(f"s_lshl_b32 s{S_T1}, s{S_T0}, 10")
        A(f"v_add_u32 v5, s{S_T1}, v1")
        A(f"ds_read_b128 v[{24+4*n}:{27+4*n}], v5")
    A("s_waitcnt lgkmcnt(0)")
    for n in range(8):
        A(f"s_add_u32 s{S_T0}, s{S_W}, {8*n}")
        A(f"s_cmp_ge_u32 s{S_T0}, 60")
        A("s_cbranch_scc1 K1_END")
        A(f"s_lshr_b32 s{S_T1}, s{S_T0}, 2")
        A(f"s_mul_i32 s{S_T2}, s{S_T1}, 13")
        A(f"s_lshr_b32 s{S_T2}, s{S_T2}, 6")
        A(f"s_mul_i32 s{S_C3}, s{S_T2}, 5")
        A(f"s_sub_u32 s{S_T1}, s{S_T1}, s{S_C3}")
        A(f"s_add_u32 s{S_T1}, s{S_T1}, s{S_C1}")
        A(f"s_cmp_ge_u32 s{S_T1}, 54")
        A(f"s_cbranch_scc1 K1_HSK{n}")
        A(f"s_add_u32 s{S_T2}, s{S_T2}, s{S_C2}")
        A(f"s_mul_i32 s{S_T2}, s{S_T2}, 54")
        A(f"s_add_u32 s{S_T2}, s{S_T2}, s{S_T1}")
        A(f"s_lshl_b32 s{S_T2}, s{S_T2}, 12")
        A(f"s_and_b32 s{S_T0}, s{S_T0}, 3")
        A(f"s_lshl_b32 s{S_T0}, s{S_T0}, 10")
        A(f"s_add_u32 s{S_T2}, s{S_T2}, s{S_T0}")
        A(f"buffer_store_dwordx4 v[{24+4*n}:{27+4*n}], v1, s[{SO}:{SO+3}], s{S_T2} offen")
        A.label(f"K1_HSK{n}")
    A("s_branch K1_END")

    A.label("K1_KV")
    mainloop(False, "kv")
    A(f"s_and_b32 s{S_T0}, s{S_W}, 3")
    A(f"s_mul_i32 s{S_T2}, s{S_T0}, 48")
    A(f"s_mul_i32 s{S_C1}, s{S_RT}, 192")
    A(f"s_add_u32 s{S_T2}, s{S_T2}, s{S_C1}")
    A(f"s_mov_b32 s{S_C1}, {LOG2E}")
    A(f"s_mov_b32 s{S_C2}, {f32(1e-6)}")
    KV = 24
    for i in range(40):
        A(f"v_mov_b32 v{KV+i}, 0")
    A("v_mov_b32 v64, 0x3f803f80")
    A("v_mov_b32 v65, 0x3f803f80")
    A("v_cmp_gt_u32 s[54:55], 8, v4")
    PK = 66
    T = 148
    A(f"s_mov_b32 s96, {LOG2E}")
    A(f"s_mov_b32 s97, {LOG2E}")
    A(f"s_mov_b32 s98, {f32(1e-6)}")
    A(f"s_mov_b32 s99, {f32(1e-6)}")
    pairs = [(0, 2), (0, 3), (1, 2), (1, 3), (1, 4), (2, 3), (2, 4)]
    for mt in range(3):
        A(f"s_add_u32 s{S_T0}, s{S_T2}, {16*mt}")
        A(f"s_cmp_ge_u32 s{S_T0}, 2048")
        A("s_cbranch_scc1 K1_KV_RED")
        phi_block(acc(mt, 0), 8, T)
        phi_block(acc(mt, 2), 4, 76)
        for r in range(4):
            A(f"v_cndmask_b32 v{76+r}, v{acc(mt,2)+r}, v{76+r}, s[54:55]")
        for j in range(5):
            src = T + 4 * j if j <= 1 else (76 if j == 2 else acc(mt, j))
            A(f"v_cvt_pk_bf16_f32 v{PK+2*j}, v{src}, v{src+1}")
            A(f"v_cvt_pk_bf16_f32 v{PK+2*j+1}, v{src+2}, v{src+3}")
        A("s_nop 1")
        for pi, (a, b) in enumerate(pairs):
            d = f"v[{KV+4*pi}:{KV+4*pi+3}]"
            A(f"v_mfma_f32_16x16x16_bf16 {d}, v[{PK+2*a}:{PK+2*a+1}], v[{PK+2*b}:{PK+2*b+1}], {d}")
        for a in range(3):
            d = f"v[{KV+4*(7+a)}:{KV+4*(7+a)+3}]"
            A(f"v_mfma_f32_16x16x16_bf16 {d}, v[{PK+2*a}:{PK+2*a+1}], v[64:65], {d}")
        A("s_nop 7")
    A.label("K1_KV_RED")
    A("s_nop 7")
    A("s_nop 7")
    A("s_barrier")
    A(f"s_mul_i32 s{S_T0}, s{S_W}, 10240")
    A("v_lshlrev_b32 v1, 4, v2")
    A(f"v_add_u32 v5, s{S_T0}, v1")
    for i in range(10):
        A(f"ds_write_b128 v5, v[{KV+4*i}:{KV+4*i+3}] offset:{1024*i}")
    A("s_waitcnt lgkmcnt(0)")
    A("s_barrier")
    A(f"s_mul_i32 s{S_C1}, s{S_RT}, {KVC_RT}")
    A(f"s_mul_i32 s{S_C2}, s{S_CT}, 6400")
    A(f"s_add_u32 s{S_C2}, s{S_C2}, s{S_C1}")
    A(f"s_mul_i32 s{S_C3}, s{S_CT}, 320")
    A(f"s_add_u32 s{S_C3}, s{S_C3}, s{S_C1}")
    A(f"s_add_u32 s{S_C3}, s{S_C3}, {51200 - 6400}")
    A("v_mov_b32 v30, 0x7fffffff")
    for n in range(4):
        A(f"v_add_u32 v8, {512*n}, v0")
        A("v_cmp_gt_u32 vcc, 1600, v8")
        A("s_nop 1")
        A("s_mov_b64 s[56:57], vcc")
        A("v_mul_u32_u24 v9, 41944, v8")
        A("v_lshrrev_b32 v9, 24, v9")
        A("v_mul_u32_u24 v10, 400, v9")
        A("v_sub_u32 v10, v8, v10")
        A("v_mul_u32_u24 v11, 3277, v10")
        A("v_lshrrev_b32 v11, 16, v11")
        A("v_mul_u32_u24 v12, 20, v11")
        A("v_sub_u32 v12, v10, v12")
        A("v_and_b32 v13, 1, v9")
        A("v_mul_u32_u24 v13, 20, v13")
        A("v_add_u32 v11, v11, v13")
        A("v_add_u32 v12, v12, v13")
        A("v_add_u32 v12, 40, v12")
        A("v_lshrrev_b32 v9, 1, v9")
        A("v_subrev_u32 v14, 1600, v8")
        A("v_cmp_le_u32 vcc, 40, v14")
        A("v_mov_b32 v15, 0")
        A("v_mov_b32 v16, 1")
        A("v_cndmask_b32 v15, v15, v16, vcc")
        A("v_mul_u32_u24 v16, 40, v15")
        A("v_sub_u32 v14, v14, v16")
        A("v_cndmask_b32 v9, v15, v9, s[56:57]")
        A("v_cndmask_b32 v11, v14, v11, s[56:57]")
        A("v_lshrrev_b32 v13, 4, v11")
        A("v_lshlrev_b32 v14, 1, v13")
        A("v_lshrrev_b32 v15, 4, v12")
        A("v_add_u32 v14, v14, v15")
        A("v_subrev_u32 v14, 2, v14")
        A("v_add_u32 v13, 7, v13")
        A("v_cndmask_b32 v13, v13, v14, s[56:57]")
        A("v_and_b32 v14, 15, v12")
        A("v_cndmask_b32 v14, 0, v14, s[56:57]")
        A("v_bfe_u32 v15, v11, 2, 2")
        A("v_lshlrev_b32 v15, 4, v15")
        A("v_add_u32 v14, v14, v15")
        A("v_lshlrev_b32 v14, 4, v14")
        A("v_and_b32 v15, 3, v11")
        A("v_lshlrev_b32 v15, 2, v15")
        A("v_add_u32 v14, v14, v15")
        A("v_lshlrev_b32 v13, 10, v13")
        A("v_add_u32 v14, v14, v13")
        A("v_mul_u32_u24 v9, 40960, v9")
        A("v_add_u32 v14, v14, v9")
        A("v_and_b32 v14, 0xffff, v14")
        for m in range(4):
            A(f"ds_read_b32 v{20+m}, v14 offset:{10240*m}")
        A("v_lshlrev_b32 v15, 2, v8")
        A(f"v_add_u32 v16, s{S_C2}, v15")
        A(f"v_add_u32 v17, s{S_C3}, v15")
        A("v_cndmask_b32 v16, v17, v16, s[56:57]")
        if n == 3:
            A("v_cmp_gt_u32 vcc, 1680, v8")
            A("s_nop 1")
            A("v_cndmask_b32 v16, v30, v16, vcc")
        A("s_waitcnt lgkmcnt(0)")
        A("v_add_f32 v20, v20, v21")
        A("v_add_f32 v22, v22, v23")
        A("v_add_f32 v20, v20, v22")
        A(f"buffer_store_dword v20, v16, s[{SO}:{SO+3}], 0 offen")
    A.label("K1_END")
    A.stamp(9)
    A.stamp_flush(0, 44, 45, 166)
    A.label("K1_EXIT")
    A("s_endpgm")
    kd(A, name, 168)

K2_LDS = 8192
def gen_k2(A):
    name = "k2_small_kernel"
    khead(A, name)
    SKV, SWO, SPQ, SPS, SXX, SGW, SM, SOM = 8, 12, 16, 20, 24, 28, 32, 36
    A.stamp(0)
    A("s_cmp_ge_u32 s2, 256")
    A("s_cbranch_scc1 K2_EXIT")
    A("s_load_dwordx2 s[40:41], s[0:1], 0")
    A("s_load_dwordx2 s[42:43], s[0:1], 16")
    A("s_load_dwordx2 s[44:45], s[0:1], 64")
    A("s_load_dwordx2 s[46:47], s[0:1], 88")
    A("s_waitcnt lgkmcnt(0)")
    srd(A, SXX, 40, 41, 2048 * 640 * 2)
    srd(A, SWO, 42, 43, 640 * 640 * 2)
    srd(A, SGW, 44, 45, 1280)
    def wssrd(d, off, n):
        A(f"s_add_u32 s48, s46, {off}")
        A("s_addc_u32 s49, s47, 0")
        srd(A, d, 48, 49, n)
    wssrd(SKV, WS_KVP, KVP_BYTES)
    wssrd(SPQ, WS_PQ, 2048 * 640 * 2)
    wssrd(SPS, WS_PQS, 2048 * 640 * 2)
    wssrd(SM, WS_M, 640 * 640 * 2)
    wssrd(SOM, WS_OMG, 8192)
    A("s_lshr_b32 s4, s2, 3")
    A("s_and_b32 s5, s2, 7")
    A("v_mul_u32_u24 v1, 6554, v0")
    A("v_lshrrev_b32 v1, 16, v1")
    A("v_mul_u32_u24 v2, 10, v1")
    A("v_sub_u32 v2, v0, v2")
    A("s_mul_i32 s6, s4, 25600")
    A("s_mul_i32 s7, s5, 160")
    A("s_add_u32 s6, s6, s7")
    A("v_lshlrev_b32 v3, 4, v2")
    A("v_add_u32 v3, s6, v3")
    for e in range(20):
        if e * 1280 <= 4095:
            A(f"buffer_load_dwordx4 v[{100+4*e}:{103+4*e}], v3, s[{SWO}:{SWO+3}], 0 offen offset:{e*1280}")
        else:
            A(f"s_mov_b32 s50, {e*1280}")
            A(f"buffer_load_dwordx4 v[{100+4*e}:{103+4*e}], v3, s[{SWO}:{SWO+3}], s50 offen")
    A("v_lshrrev_b32 v4, 5, v0")
    A("v_and_b32 v5, 31, v0")
    A("s_lshl_b32 s6, s2, 3")
    A("v_add_u32 v4, s6, v4")
    A("v_mul_u32_u24 v6, 1280, v4")
    A("v_mul_u32_u24 v7, 40, v5")
    A("v_add_u32 v6, v6, v7")
    for i in range(5):
        A(f"buffer_load_dwordx2 v[{20+2*i}:{21+2*i}], v6, s[{SPQ}:{SPQ+3}], 0 offen offset:{8*i}")
    for i in range(5):
        A(f"buffer_load_dwordx2 v[{30+2*i}:{31+2*i}], v6, s[{SXX}:{SXX+3}], 0 offen offset:{8*i}")
    for i in range(5):
        A(f"buffer_load_dwordx2 v[{40+2*i}:{41+2*i}], v7, s[{SGW}:{SGW+3}], 0 offen offset:{8*i}")
    A("s_load_dwordx2 s[52:53], s[0:1], 48")
    A(f"s_add_u32 s48, s46, {WS_W2B}")
    A("s_addc_u32 s49, s47, 0")
    srd(A, 84, 48, 49, 1728 * 640 * 2)
    A("s_waitcnt lgkmcnt(0)")
    srd(A, 88, 52, 53, 1728 * 640 * 2)
    A("s_lshl_b32 s6, s2, 3")
    for n in range(3):
        A(f"v_add_u32 v8, {256*n}, v0")
        A("v_mul_u32_u24 v12, 820, v8")
        A("v_lshrrev_b32 v12, 16, v12")
        A("v_mul_u32_u24 v13, 80, v12")
        A("v_sub_u32 v13, v8, v13")
        A("v_add_u32 v12, s6, v12")
        A("v_mul_u32_u24 v14, 1280, v12")
        A("v_lshlrev_b32 v15, 4, v13")
        A("v_add_u32 v14, v14, v15")
        if n == 2:
            A("v_cmp_gt_u32 vcc, 128, v0")
            A("v_mov_b32 v15, 0x7fffffff")
            A("s_nop 1")
            A("v_cndmask_b32 v14, v15, v14, vcc")
        A(f"buffer_load_dwordx4 v[{228+4*n}:{231+4*n}], v14, s[88:91], 0 offen")
        A("v_mul_u32_u24 v15, 6554, v13")
        A("v_lshrrev_b32 v15, 16, v15")
        A("v_mul_u32_u24 v16, 10, v15")
        A("v_sub_u32 v16, v13, v16")
        A("v_mul_u32_u24 v15, 54, v15")
        A("v_lshrrev_b32 v17, 5, v12")
        A("v_add_u32 v15, v15, v17")
        A("v_mul_u32_u24 v15, 5120, v15")
        A("v_and_b32 v17, 31, v12")
        A("v_lshrrev_b32 v18, 3, v17")
        A("v_and_b32 v18, 1, v18")
        A("v_lshlrev_b32 v18, 2, v18")
        A("v_xor_b32 v17, v17, v18")
        A("v_mul_u32_u24 v17, 160, v17")
        A("v_add_u32 v15, v15, v17")
        A("v_lshlrev_b32 v16, 4, v16")
        A(f"v_add_u32 v{240+n}, v15, v16")
        if n == 2:
            A("v_mov_b32 v15, 0x7fffffff")
            A(f"v_cndmask_b32 v{240+n}, v15, v{240+n}, vcc")
    A("s_cmp_ge_u32 s2, 216")
    A("s_cbranch_scc0 K2_W2OK")
    for n in range(3):
        A(f"v_mov_b32 v{240+n}, 0x7fffffff")
    A.label("K2_W2OK")
    A("v_lshlrev_b32 v8, 2, v0")
    A("v_add_u32 v9, 51200, v8")
    A("v_mov_b32 v12, 0x7fffffff")
    A("v_add_u32 v11, 2048, v9")
    A("v_cmp_gt_u32 vcc, 128, v0")
    A("s_mul_i32 s6, s4, 1600")
    A("v_add_u32 v17, s6, v8")
    A("v_cndmask_b32 v11, v12, v11, vcc")
    A("v_add_u32 v18, 1024, v17")
    A("v_cmp_gt_u32 vcc, 144, v0")
    A("s_nop 1")
    A("v_cndmask_b32 v18, v12, v18, vcc")
    for rt in range(11):
        A(f"s_mov_b32 s50, {rt*KVC_RT}")
        A(f"buffer_load_dword v{50+rt}, v9, s[{SKV}:{SKV+3}], s50 offen")
        A(f"buffer_load_dword v{61+rt}, v9, s[{SKV}:{SKV+3}], s50 offen offset:1024")
        A(f"buffer_load_dword v{72+rt}, v11, s[{SKV}:{SKV+3}], s50 offen")
    for rt in range(11):
        A(f"s_mov_b32 s50, {rt*KVC_RT}")
        A(f"buffer_load_dword v{180+rt}, v17, s[{SKV}:{SKV+3}], s50 offen")
        A(f"buffer_load_dword v{191+rt}, v18, s[{SKV}:{SKV+3}], s50 offen")
    A.stamp(1)
    A("s_waitcnt vmcnt(22)")
    A.stamp(2)
    for n in range(3):
        for rt in range(1, 11):
            A(f"v_add_f32 v{50+11*n}, v{50+11*n}, v{50+11*n+rt}")
    A("v_cvt_pk_bf16_f32 v12, v50, v61")
    A("v_cvt_pk_bf16_f32 v13, v72, v72")
    A("v_lshlrev_b32 v14, 16, v12")
    A("v_and_b32 v15, 0xffff0000, v12")
    A("v_lshlrev_b32 v16, 16, v13")
    A("v_lshlrev_b32 v8, 2, v0")
    A("ds_write_b32 v8, v14")
    A("ds_write_b32 v8, v15 offset:1024")
    A("ds_write_b32 v8, v16 offset:2048")
    A("s_waitcnt vmcnt(0)")
    A.stamp(3)
    for n in range(2):
        for rt in range(1, 11):
            A(f"v_add_f32 v{180+11*n}, v{180+11*n}, v{180+11*n+rt}")
    A("v_cvt_pk_bf16_f32 v12, v180, v191")
    A("v_lshlrev_b32 v14, 16, v12")
    A("v_and_b32 v15, 0xffff0000, v12")
    A("ds_write_b32 v8, v14 offset:4096")
    A("ds_write_b32 v8, v15 offset:5120")
    A("v_mov_b32 v84, 0")
    for i in range(10):
        A(f"v_lshlrev_b32 v12, 16, v{30+i}")
        A(f"v_lshlrev_b32 v13, 16, v{40+i}")
        A("v_fmac_f32 v84, v12, v13")
        A(f"v_and_b32 v12, 0xffff0000, v{30+i}")
        A(f"v_and_b32 v13, 0xffff0000, v{40+i}")
        A("v_fmac_f32 v84, v12, v13")
    for m in (1, 2, 4, 8, 16):
        A(f"ds_swizzle_b32 v12, v84 offset:{(m << 10) | 0x1F}")
        A("s_waitcnt lgkmcnt(0)")
        A("v_add_f32 v84, v84, v12")
    A("s_barrier")
    A.stamp(4)
    A("v_cvt_pk_bf16_f32 v12, v84, v84")
    A("v_lshlrev_b32 v12, 16, v12")
    A(f"s_mov_b32 s50, {f32(-1.4426950408889634)}")
    A("v_mul_f32 v12, s50, v12")
    A("v_exp_f32 v12, v12")
    A("s_nop 0")
    A("v_add_f32 v12, 1.0, v12")
    A("v_rcp_f32 v85, v12")
    A("v_mul_u32_u24 v13, 80, v5")
    for i in range(5):
        A(f"ds_read_b128 v[{60+4*i}:{63+4*i}], v13 offset:{16*i}")
    for i in range(10):
        A(f"v_lshlrev_b32 v{204+2*i}, 16, v{20+i}")
        A(f"v_and_b32 v{205+2*i}, 0xffff0000, v{20+i}")
    A("s_waitcnt lgkmcnt(0)")
    A("v_mov_b32 v86, 0")
    for i in range(20):
        A(f"v_fmac_f32 v86, v{204+i}, v{60+i}")
    A(f"s_mov_b32 s51, {f32(1e-6)}")
    A("v_add_f32 v86, s51, v86")
    A("v_rcp_f32 v86, v86")
    A("s_nop 0")
    A("v_mul_f32 v86, v86, v85")
    for i in range(20):
        A(f"v_mul_f32 v{204+i}, v{204+i}, v86")
    for i in range(10):
        A(f"v_cvt_pk_bf16_f32 v{20+i}, v{204+2*i}, v{205+2*i}")
    A("v_and_b32 v12, 63, v4")
    A("v_lshrrev_b32 v13, 2, v12")
    A("v_sub_u32 v13, 0, v13")
    A("v_and_b32 v13, 3, v13")
    A("v_lshrrev_b32 v14, 6, v4")
    A("v_mul_u32_u24 v14, 81920, v14")
    A("v_lshlrev_b32 v12, 6, v12")
    A("v_add_u32 v14, v14, v12")
    A("v_mul_u32_u24 v15, 20, v5")
    for i in range(5):
        A(f"v_add_u32 v16, {4*i}, v15")
        A("v_lshrrev_b32 v17, 5, v16")
        A("v_lshlrev_b32 v17, 12, v17")
        A("v_bfe_u32 v18, v16, 3, 2")
        A("v_xor_b32 v18, v18, v13")
        A("v_lshlrev_b32 v18, 4, v18")
        A("v_add_u32 v17, v17, v18")
        A("v_and_b32 v18, 4, v16")
        A("v_lshlrev_b32 v18, 1, v18")
        A("v_add_u32 v17, v17, v18")
        A(f"v_add_u32 v{90+i}, v14, v17")
        A(f"buffer_store_dwordx2 v[{20+2*i}:{21+2*i}], v{90+i}, s[{SPS}:{SPS+3}], 0 offen")
    A("v_sub_f32 v12, 1.0, v85")
    A("v_lshlrev_b32 v13, 2, v4")
    A("v_cmp_eq_u32 vcc, 0, v5")
    A("v_mov_b32 v14, 0x7fffffff")
    A("s_nop 1")
    A("v_cndmask_b32 v13, v14, v13, vcc")
    A(f"buffer_store_dword v12, v13, s[{SOM}:{SOM+3}], 0 offen")
    A.stamp(5)
    A("v_mul_u32_u24 v13, 80, v1")
    for i in range(5):
        A(f"ds_read_b128 v[{60+4*i}:{63+4*i}], v13 offset:{4096+16*i}")
    for c in range(8):
        A(f"v_mov_b32 v{204+c}, 0")
    A("s_waitcnt lgkmcnt(0)")
    for e in range(20):
        for c2 in range(4):
            A(f"v_lshlrev_b32 v12, 16, v{100+4*e+c2}")
            A(f"v_and_b32 v14, 0xffff0000, v{100+4*e+c2}")
            A(f"v_fmac_f32 v{204+2*c2}, v{60+e}, v12")
            A(f"v_fmac_f32 v{205+2*c2}, v{60+e}, v14")
    for c2 in range(4):
        A(f"v_cvt_pk_bf16_f32 v{216+c2}, v{204+2*c2}, v{205+2*c2}")
    A("s_mul_i32 s6, s4, 20")
    A("v_add_u32 v13, s6, v1")
    A("v_lshrrev_b32 v12, 5, v13")
    A("s_mul_i32 s7, s5, 20")
    A("v_add_u32 v12, s7, v12")
    A("v_mul_u32_u24 v12, 5120, v12")
    A("v_and_b32 v13, 31, v13")
    A("v_lshrrev_b32 v15, 3, v13")
    A("v_and_b32 v15, 1, v15")
    A("v_lshlrev_b32 v15, 2, v15")
    A("v_xor_b32 v13, v13, v15")
    A("v_mul_u32_u24 v13, 160, v13")
    A("v_add_u32 v13, v13, v12")
    A("v_lshlrev_b32 v12, 4, v2")
    A("v_add_u32 v13, v13, v12")
    A("v_cmp_gt_u32 vcc, 200, v0")
    A("v_mov_b32 v14, 0x7fffffff")
    A("s_nop 1")
    A("v_cndmask_b32 v13, v14, v13, vcc")
    A(f"buffer_store_dwordx4 v[216:219], v13, s[{SM}:{SM+3}], 0 offen")
    for n in range(3):
        A(f"buffer_store_dwordx4 v[{228+4*n}:{231+4*n}], v{240+n}, s[84:87], 0 offen")
    A.label("K2_END")
    A.stamp(9)
    A.stamp_flush(1, 46, 47)
    A.label("K2_EXIT")
    A("s_endpgm")
    kd(A, name, 256 if STAMP else 244)

K3_SLOT = 9216
K3_LDS = 4 * 4 * K3_SLOT
def gen_k3(A):
    name = NAME + "_kernel"
    khead(A, name)
    SA, SB_, SO, SB2, SOM = 8, 12, 16, 20, 24
    S_RT, S_CT, S_W = 4, 5, 7
    S_AOFF, S_BOFF, S_LB = 28, 29, 30
    S_T0, S_T1, S_T2 = 31, 32, 33
    A.stamp(0)
    A("s_cmp_ge_u32 s2, 256")
    A("s_cbranch_scc1 K3_EXIT")
    A("s_load_dwordx4 s[36:39], s[0:1], 48")
    A("s_load_dwordx2 s[40:41], s[0:1], 72")
    A("s_load_dwordx2 s[42:43], s[0:1], 88")
    A("s_and_b32 s3, s2, 7")
    A("s_lshl_b32 s3, s3, 2")
    A(f"s_lshr_b32 s{S_T0}, s2, 3")
    A(f"s_and_b32 s{S_T1}, s{S_T0}, 3")
    A(f"s_add_u32 s{S_RT}, s3, s{S_T1}")
    A(f"s_lshr_b32 s{S_CT}, s2, 5")
    A("v_lshrrev_b32 v1, 6, v0")
    A("v_and_b32 v2, 63, v0")
    A("s_nop 0")
    A(f"v_readfirstlane_b32 s{S_W}, v1")
    A("v_lshrrev_b32 v3, 4, v2")
    A("v_and_b32 v4, 15, v2")
    A("s_waitcnt lgkmcnt(0)")
    srd(A, SO, 40, 41, 2048 * 640 * 2)
    srd(A, SB2, 38, 39, 1280)
    A(f"s_add_u32 s44, s42, {WS_OMG}")
    A("s_addc_u32 s45, s43, 0")
    srd(A, SOM, 44, 45, 8192)
    A(f"s_cmp_eq_u32 s{S_W}, 3")
    A("s_cbranch_scc1 K3_SET_ATT")
    A(f"s_add_u32 s44, s42, {WS_H}")
    A("s_addc_u32 s45, s43, 0")
    srd(A, SA, 44, 45, 2048 * 1728 * 2)
    A(f"s_add_u32 s44, s42, {WS_W2B}")
    A("s_addc_u32 s45, s43, 0")
    srd(A, SB_, 44, 45, 1728 * 640 * 2)
    A(f"s_mul_i32 s{S_AOFF}, s{S_RT}, 54")
    A(f"s_mul_i32 s{S_BOFF}, s{S_CT}, 54")
    A(f"s_mul_i32 s{S_T0}, s{S_W}, 18")
    A(f"s_add_u32 s{S_AOFF}, s{S_AOFF}, s{S_T0}")
    A(f"s_add_u32 s{S_BOFF}, s{S_BOFF}, s{S_T0}")
    A("s_branch K3_SET_DONE")
    A.label("K3_SET_ATT")
    A(f"s_add_u32 s44, s42, {WS_PQS}")
    A("s_addc_u32 s45, s43, 0")
    srd(A, SA, 44, 45, 2048 * 640 * 2)
    A(f"s_add_u32 s44, s42, {WS_M}")
    A("s_addc_u32 s45, s43, 0")
    srd(A, SB_, 44, 45, 640 * 640 * 2)
    A(f"s_mul_i32 s{S_AOFF}, s{S_RT}, 20")
    A(f"s_mul_i32 s{S_BOFF}, s{S_CT}, 20")
    A.label("K3_SET_DONE")
    A(f"s_lshl_b32 s{S_AOFF}, s{S_AOFF}, 12")
    A(f"s_mul_i32 s{S_BOFF}, s{S_BOFF}, 5120")
    A(f"s_mul_i32 s{S_LB}, s{S_W}, {4*K3_SLOT}")
    A(f"s_lshl_b32 s{S_T0}, s{S_RT}, 6")
    A(f"s_lshl_b32 s{S_T1}, s{S_W}, 4")
    A(f"s_add_u32 s{S_T0}, s{S_T0}, s{S_T1}")
    A(f"v_add_u32 v5, s{S_T0}, v4")
    A("v_lshlrev_b32 v1, 2, v5")
    A(f"buffer_load_dword v110, v1, s[{SOM}:{SOM+3}], 0 offen")
    A(f"s_mul_i32 s{S_T1}, s{S_CT}, 160")
    A("v_lshlrev_b32 v1, 3, v3")
    A(f"v_add_u32 v1, s{S_T1}, v1")
    for j in range(5):
        A(f"buffer_load_dwordx2 v[{112+2*j}:{113+2*j}], v1, s[{SB2}:{SB2+3}], 0 offen offset:{32*j}")
    A("v_mul_u32_u24 v111, 1280, v5")
    A("v_add_u32 v111, v111, v1")
    VAO, VBO = 6, 7
    A("v_lshlrev_b32 v6, 4, v2")
    A("v_add_u32 v7, 4096, v6")
    A("v_lshrrev_b32 v1, 2, v4")
    A("v_sub_u32 v18, 0, v1")
    A("v_and_b32 v18, 3, v18")
    A("v_xor_b32 v18, v18, v3")
    A("v_lshlrev_b32 v18, 4, v18")
    A("v_lshlrev_b32 v15, 6, v4")
    A("v_add_u32 v15, v15, v18")
    A(f"v_add_u32 v15, s{S_LB}, v15")
    A("v_lshlrev_b32 v18, 3, v3")
    A("v_add_u32 v18, v18, v1")
    A("v_and_b32 v19, 1, v3")
    A("v_lshlrev_b32 v19, 2, v19")
    A("v_add_u32 v20, v18, v19")
    A("v_xor_b32 v19, 4, v19")
    A("v_add_u32 v21, v18, v19")
    A("v_and_b32 v19, 3, v2")
    A("v_lshlrev_b32 v19, 3, v19")
    A(f"s_add_u32 s{S_T0}, s{S_LB}, 4096")
    A("v_mul_u32_u24 v16, 160, v20")
    A("v_add_u32 v16, v16, v19")
    A(f"v_add_u32 v16, s{S_T0}, v16")
    A("v_mul_u32_u24 v17, 160, v21")
    A("v_add_u32 v17, v17, v19")
    A(f"v_add_u32 v17, s{S_T0}, v17")
    FR = [22, 58]
    ACC = 128
    def acc(mt, j):
        return ACC + 4 * (mt * 5 + j)
    for i in range(80):
        A(f"v_mov_b32 v{ACC+i}, 0")

    S_N, S_T, S_DS, S_RS3 = 50, 51, 52, 53
    S_MB = 54
    def dma_instr(i):
        if i < 4:
            return f"buffer_load_dwordx4 v6, s[{SA}:{SA+3}], s{S_AOFF} offen offset:{1024*i} lds"
        if i < 8:
            return f"buffer_load_dwordx4 v6, s[{SB_}:{SB_+3}], s{S_BOFF} offen offset:{1024*(i-4)} lds"
        return f"buffer_load_dwordx4 v7, s[{SB_}:{SB_+3}], s{S_BOFF} offen lds"
    def m0_of(i):
        return S_M0 + (0 if i < 4 else (1 if i < 8 else 2))
    def adv():
        A(f"s_add_u32 s{S_AOFF}, s{S_AOFF}, 4096")
        A(f"s_add_u32 s{S_BOFF}, s{S_BOFF}, 5120")
        A(f"s_add_u32 s{S_DS}, s{S_DS}, {K3_SLOT}")
        A(f"s_cmp_eq_u32 s{S_DS}, {4*K3_SLOT}")
        A(f"s_cselect_b32 s{S_DS}, 0, s{S_DS}")
        A(f"s_add_u32 s{S_M0}, s{S_LB}, s{S_DS}")
        A(f"s_add_u32 s{S_M0+1}, s{S_M0}, 4096")
        A(f"s_add_u32 s{S_M0+2}, s{S_M0}, 8192")
    S_M0 = 88
    def reads(fs):
        out = []
        for mt in range(4):
            out.append(f"ds_read_b128 v[{fs+4*mt}:{fs+4*mt+3}], v15 offset:{mt*1024}")
        for j in range(5):
            for hh in range(2):
                r = fs + 16 + 4 * j + 2 * hh
                out.append(f"ds_read_b64_tr_b16 v[{r}:{r+1}], v{16+hh} offset:{32*j}")
        return out
    def mfmas(fs):
        mf = []
        for j in range(5):
            for mt in range(4):
                x = f"v[{fs+4*mt}:{fs+4*mt+3}]"
                w = f"v[{fs+16+4*j}:{fs+16+4*j+3}]"
                a = f"v[{acc(mt,j)}:{acc(mt,j)+3}]"
                mf.append(f"v_mfma_f32_16x16x32_bf16 {a}, {w}, {x}, {a}")
        return mf
    def adv_read():
        A(f"s_add_u32 s{S_RS3}, s{S_RS3}, 1")
        A(f"s_cmp_eq_u32 s{S_RS3}, 4")
        A(f"s_cselect_b32 s{S_RS3}, 0, s{S_RS3}")
        A(f"s_mov_b32 s{S_T0}, {K3_SLOT}")
        A(f"s_cselect_b32 s{S_T0}, {(-3*K3_SLOT) & 0xffffffff}, s{S_T0}")
        for r in (15, 16, 17):
            A(f"v_add_u32 v{r}, s{S_T0}, v{r}")
    A(f"s_cmp_eq_u32 s{S_W}, 3")
    A(f"s_cselect_b32 s{S_N}, 20, 18")
    A(f"s_mov_b32 s{S_DS}, {3*K3_SLOT}")
    A(f"s_sub_u32 s{S_AOFF}, s{S_AOFF}, 4096")
    A(f"s_sub_u32 s{S_BOFF}, s{S_BOFF}, 5120")
    A(f"s_mov_b32 s{S_RS3}, 0")
    A.stamp(1)
    for t in range(4):
        adv()
        for d in range(9):
            if d in (0, 4, 8):
                A(f"s_mov_b32 m0, s{m0_of(d)}")
                A("s_nop 0")
            A(dma_instr(d))
    A("s_waitcnt vmcnt(27)")
    A.stamp(2)
    for r in reads(FR[0]):
        A(r)
    A(f"s_mov_b32 s{S_T}, 0")
    A.label("K3_LOOP")
    for par in range(2):
        fs, fn = FR[par], FR[par ^ 1]
        A("s_waitcnt lgkmcnt(0)")
        A(f"s_add_u32 s{S_T1}, s{S_T}, 4")
        A(f"s_cmp_lt_u32 s{S_T1}, s{S_N}")
        A(f"s_cbranch_scc0 K3_TAIL{par}")
        adv()
        adv_read()
        A(f"s_waitcnt vmcnt({18 + (0)})")
        A(f"s_cmp_eq_u32 s{S_T}, s{S_T}")
        A(f"s_branch K3_BODY{par}")
        A.label(f"K3_TAIL{par}")
        A(f"s_add_u32 s{S_T1}, s{S_T}, 1")
        A(f"s_cmp_ge_u32 s{S_T1}, s{S_N}")
        A(f"s_cbranch_scc1 K3_FIN{par}")
        adv_read()
        A("s_waitcnt vmcnt(0)")
        A(f"s_cmp_lg_u32 s{S_T}, s{S_T}")
        A.label(f"K3_BODY{par}")
        rd = reads(fn)
        k = 0
        d = 0
        for i, m in enumerate(mfmas(fs)):
            A(m)
            if k < len(rd):
                A(rd[k]); k += 1
            if i % 2 == 1 and d < 9:
                A(f"s_cbranch_scc0 K3_SK{par}_{d}")
                if d in (0, 4, 8):
                    A(f"s_mov_b32 m0, s{m0_of(d)}")
                    A("s_nop 0")
                A(dma_instr(d))
                A.label(f"K3_SK{par}_{d}")
                d += 1
        A(f"s_add_u32 s{S_T}, s{S_T}, 1")
    A("s_branch K3_LOOP")
    A.label("K3_FIN0")
    for m in mfmas(FR[0]):
        A(m)
    A("s_branch K3_DONE")
    A.label("K3_FIN1")
    for m in mfmas(FR[1]):
        A(m)
    A.label("K3_DONE")
    A("s_nop 7")
    A("s_nop 7")
    A.stamp(7)
    A("s_barrier")
    A.stamp(8)
    A(f"s_mul_i32 s{S_T0}, s{S_W}, 20480")
    A("v_lshlrev_b32 v1, 4, v2")
    A(f"v_add_u32 v5, s{S_T0}, v1")
    for i in range(20):
        A(f"ds_write_b128 v5, v[{ACC+4*i}:{ACC+4*i+3}] offset:{1024*i}")
    A("s_waitcnt lgkmcnt(0)")
    A("s_barrier")
    A(f"s_mul_i32 s{S_T0}, s{S_W}, 5120")
    A(f"v_add_u32 v5, s{S_T0}, v1")
    A("v_add_u32 v6, 40960, v5")
    for j in range(5):
        A(f"ds_read_b128 v[{22+16*j}:{25+16*j}], v5 offset:{1024*j}")
        A(f"ds_read_b128 v[{26+16*j}:{29+16*j}], v5 offset:{20480+1024*j}")
        A(f"ds_read_b128 v[{30+16*j}:{33+16*j}], v6 offset:{1024*j}")
        A(f"ds_read_b128 v[{34+16*j}:{37+16*j}], v6 offset:{20480+1024*j}")
    A("s_waitcnt vmcnt(0) lgkmcnt(0)")
    for j in range(5):
        b = 22 + 16 * j
        for r in range(4):
            A(f"v_add_f32 v{b+r}, v{b+r}, v{b+4+r}")
        for r in range(4):
            A(f"v_add_f32 v{b+r}, v{b+r}, v{b+8+r}")
        A(f"v_lshlrev_b32 v{b+4}, 16, v{112+2*j}")
        A(f"v_and_b32 v{b+5}, 0xffff0000, v{112+2*j}")
        A(f"v_lshlrev_b32 v{b+6}, 16, v{113+2*j}")
        A(f"v_and_b32 v{b+7}, 0xffff0000, v{113+2*j}")
        for r in range(4):
            A(f"v_add_f32 v{b+r}, v{b+r}, v{b+4+r}")
        for r in range(4):
            A(f"v_fma_f32 v{b+r}, v{b+r}, v110, v{b+12+r}")
        A(f"v_cvt_pk_bf16_f32 v{b+8}, v{b}, v{b+1}")
        A(f"v_cvt_pk_bf16_f32 v{b+9}, v{b+2}, v{b+3}")
        A(f"buffer_store_dwordx2 v[{b+8}:{b+9}], v111, s[{SO}:{SO+3}], 0 offen offset:{32*j}")
    A.label("K3_END")
    A.stamp(9)
    A.stamp_flush(2, 42, 43)
    A.label("K3_EXIT")
    A("s_endpgm")
    kd(A, name, 256 if STAMP else 208)

def main():
    A = Asm()
    hdr = open(f"cdna_kernels/{NAME}.s.ref").read().splitlines()
    for l in hdr:
        if l.startswith("; @launch"):
            break
        A.raw(l)
    A.raw(f"; @launch kernel=k1_gemm_kernel grid=(256,1,1) block=(512,1,1) lds={K1_LDS}")
    A.raw(f"; @launch kernel=k2_small_kernel grid=(256,1,1) block=(256,1,1) lds={K2_LDS}")
    A.raw(f"; @launch kernel={NAME}_kernel grid=(256,1,1) block=(256,1,1) lds={K3_LDS}")
    A.raw('.amdgcn_target "amdgcn-amd-amdhsa--gfx950"')
    A.raw(".text")
    gen_k1(A)
    gen_k2(A)
    gen_k3(A)
    out = sys.argv[1] if len(sys.argv) > 1 else f"cdna_kernels/{NAME}.s"
    open(out, "w").write("\n".join(A.lines) + "\n")

main()
```

```python
import sys

NAME = "gated_mix__linear_attn_block__dense_activation_gelu__prompt"

WS_H = 0
WS_PQ = 0x6C0000
WS_PQS = 0x940000
WS_M = 0xBC0000
WS_OMG = 0xC88000
WS_KVP = 0xC8A000
WS_W2B = 0xD20000
KVC_RT = 53760
KVP_BYTES = 11 * KVC_RT

LOG2E = 0x3FB8AA3B
def f32(x):
    import struct
    return struct.unpack("<I", struct.pack("<f", x))[0]

import os
STAMP = int(os.environ.get("STAMP", "0"))
WS_DBG = 0x1000000
class Asm:
    def __init__(self):
        self.lines = []
        self.nst = 0
    def stamp(self, i):
        if STAMP:
            self(f"s_memtime s[{60+2*i}:{61+2*i}]")
    def stamp_flush(self, kidx, ws_lo, ws_hi, va=250):
        if not STAMP:
            return
        n = 12
        self("s_getreg_b32 s82, hwreg(HW_REG_XCC_ID)")
        self("s_waitcnt lgkmcnt(0)")
        self(f"s_add_u32 s88, s{ws_lo}, {WS_DBG + kidx*0x40000}")
        self(f"s_addc_u32 s89, s{ws_hi}, 0")
        self("s_mov_b32 s92, s88")
        self("s_and_b32 s93, s89, 0xffff")
        self("s_mov_b32 s94, 0x40000")
        self("s_mov_b32 s95, 0x00020000")
        self(f"v_lshrrev_b32 v{va}, 6, v0")
        self("s_lshl_b32 s88, s2, 4")
        self(f"v_add_u32 v{va}, s88, v{va}")
        self(f"v_lshlrev_b32 v{va}, 6, v{va}")
        for i in range(n):
            self(f"v_mov_b32 v{va+1}, s{60+2*i}")
            self(f"buffer_store_dword v{va+1}, v{va}, s[92:95], 0 offen offset:{4*i}")
        self.nst = 0
    def __call__(self, s):
        self.lines.append("    " + s)
    def label(self, l):
        self.lines.append(l + ":")
    def raw(self, s):
        self.lines.append(s)

def vr(a, n=1):
    return f"v{a}" if n == 1 else f"v[{a}:{a+n-1}]"
def sr(a, n=1):
    return f"s{a}" if n == 1 else f"s[{a}:{a+n-1}]"

def srd(A, d, lo, hi, nbytes):
    A(f"s_mov_b32 s{d}, s{lo}")
    A(f"s_and_b32 s{d+1}, s{hi}, 0xffff")
    A(f"s_mov_b32 s{d+2}, {nbytes}")
    A(f"s_mov_b32 s{d+3}, 0x00020000")

def kd(A, name, vgpr, sgpr=102):
    A.raw('.section .rodata,"a"')
    A.raw(".p2align 6")
    A.raw(f".amdhsa_kernel {name}")
    acc = (vgpr + 3) // 4 * 4
    A.raw(f"  .amdhsa_next_free_vgpr {vgpr}")
    A.raw(f"  .amdhsa_next_free_sgpr {sgpr}")
    A.raw(f"  .amdhsa_accum_offset {acc}")
    A.raw("  .amdhsa_group_segment_fixed_size 0")
    A.raw("  .amdhsa_kernarg_size 96")
    A.raw("  .amdhsa_user_sgpr_count 2")
    A.raw("  .amdhsa_user_sgpr_kernarg_segment_ptr 1")
    A.raw("  .amdhsa_system_sgpr_workgroup_id_x 1")
    A.raw(".end_amdhsa_kernel")
    A.raw(".text")

def khead(A, name):
    A.raw(f".globl {name}")
    A.raw(".p2align 8")
    A.raw(f".type {name},@function")
    A.label(name)

K1_SLOT = 45056
K1_WOFF = 24576
K1_LDS = 3 * K1_SLOT

def gen_k1(A):
    name = "k1_gemm_kernel"
    khead(A, name)
    S_RT, S_CT, S_W = 4, 5, 7
    SX, SW, SO, SB = 8, 12, 16, 20
    S_XOFF, S_WOFF, S_WSTR = 24, 25, 26
    S_MX = 27
    S_MW = 30
    S_RS = 33
    S_CB = 46
    S_T0, S_T1, S_T2 = 47, 48, 49
    S_TYPE = 50
    S_C1, S_C2, S_C3 = 51, 52, 53
    A.stamp(0)
    A("s_cmp_ge_u32 s2, 256")
    A("s_cbranch_scc1 K1_EXIT")
    A("s_and_b32 s3, s2, 7")
    A("s_lshl_b32 s3, s3, 5")
    A(f"s_lshr_b32 s{S_T0}, s2, 3")
    A(f"s_add_u32 s3, s3, s{S_T0}")
    A("s_cmp_ge_u32 s3, 253")
    A("s_cbranch_scc1 K1_EXIT")
    A("s_load_dwordx4 s[36:39], s[0:1], 0")
    A("s_load_dwordx4 s[40:43], s[0:1], 32")
    A("s_load_dwordx2 s[44:45], s[0:1], 88")
    A("s_cmp_lt_u32 s3, 138")
    A("s_cbranch_scc0 K1_MAPB")
    A(f"s_mul_i32 s{S_CT}, s3, 171")
    A(f"s_lshr_b32 s{S_CT}, s{S_CT}, 10")
    A(f"s_mul_i32 s{S_T0}, s{S_CT}, 6")
    A(f"s_sub_u32 s{S_RT}, s3, s{S_T0}")
    A("s_branch K1_MAPD")
    A.label("K1_MAPB")
    A("s_sub_u32 s3, s3, 138")
    A(f"s_mul_i32 s{S_CT}, s3, 205")
    A(f"s_lshr_b32 s{S_CT}, s{S_CT}, 10")
    A(f"s_mul_i32 s{S_T0}, s{S_CT}, 5")
    A(f"s_sub_u32 s{S_RT}, s3, s{S_T0}")
    A(f"s_add_u32 s{S_RT}, s{S_RT}, 6")
    A.label("K1_MAPD")
    A("v_lshrrev_b32 v1, 6, v0")
    A("v_and_b32 v2, 63, v0")
    A("s_nop 0")
    A(f"v_readfirstlane_b32 s{S_W}, v1")
    A("v_lshrrev_b32 v3, 4, v2")
    A("v_and_b32 v4, 15, v2")
    A("s_waitcnt lgkmcnt(0)")
    srd(A, SX, 36, 37, 2048 * 640 * 2)
    A(f"s_cmp_lt_u32 s{S_CT}, 8")
    A("s_cbranch_scc1 K1_SET_KV")
    A(f"s_cmp_lt_u32 s{S_CT}, 12")
    A("s_cbranch_scc1 K1_SET_Q")
    A(f"s_mov_b32 s{S_TYPE}, 2")
    srd(A, SW, 40, 41, 640 * 1728 * 2)
    A(f"s_mov_b32 s{S_RS}, 3456")
    A(f"s_sub_u32 s{S_T0}, s{S_CT}, 12")
    A(f"s_mul_i32 s{S_CB}, s{S_T0}, 320")
    A(f"s_add_u32 s{S_T1}, s44, {WS_H}")
    A(f"s_addc_u32 s{S_T2}, s45, 0")
    srd(A, SO, S_T1, S_T2, 2048 * 1728 * 2)
    A("s_branch K1_SET_DONE")
    A.label("K1_SET_Q")
    A(f"s_mov_b32 s{S_TYPE}, 1")
    srd(A, SW, 38, 39, 640 * 1920 * 2)
    A(f"s_mov_b32 s{S_RS}, 3840")
    A(f"s_sub_u32 s{S_T0}, s{S_CT}, 8")
    A(f"s_mul_i32 s{S_CB}, s{S_T0}, 320")
    A(f"s_add_u32 s{S_T1}, s44, {WS_PQ}")
    A(f"s_addc_u32 s{S_T2}, s45, 0")
    srd(A, SO, S_T1, S_T2, 2048 * 640 * 2)
    A("s_branch K1_SET_DONE")
    A.label("K1_SET_KV")
    A(f"s_mov_b32 s{S_TYPE}, 0")
    srd(A, SW, 38, 39, 640 * 1920 * 2)
    A(f"s_mov_b32 s{S_RS}, 3840")
    A(f"s_mul_i32 s{S_CB}, s{S_CT}, 160")
    A(f"s_add_u32 s{S_T1}, s44, {WS_KVP}")
    A(f"s_addc_u32 s{S_T2}, s45, 0")
    srd(A, SO, S_T1, S_T2, KVP_BYTES)
    A.label("K1_SET_DONE")
    srd(A, SB, 42, 43, 1728 * 2)
    A(f"s_lshl_b32 s{S_WSTR}, s{S_RS}, 6")
    A(f"s_mov_b32 s{S_XOFF}, 0")
    A(f"s_mov_b32 s{S_WOFF}, 0")
    A(f"s_mul_i32 s{S_MX}, s{S_W}, 3072")
    A(f"s_add_u32 s{S_MX+1}, s{S_MX}, 1024")
    A(f"s_add_u32 s{S_MX+2}, s{S_MX}, 2048")
    A(f"s_lshl_b32 s{S_MW}, s{S_W}, 10")
    A(f"s_add_u32 s{S_MW}, s{S_MW}, {K1_WOFF}")
    A(f"s_add_u32 s{S_MW+1}, s{S_MW}, 8192")
    A(f"s_add_u32 s{S_T0}, s{S_MW}, 16384")
    A(f"s_cmp_lt_u32 s{S_W}, 4")
    A(f"s_cselect_b32 s{S_MW+2}, s{S_T0}, s{S_MW+1}")
    VXO, VWO = 6, 9
    A(f"s_mul_i32 s{S_T0}, s{S_W}, 24")
    A(f"s_mul_i32 s{S_T1}, s{S_RT}, 192")
    A(f"s_add_u32 s{S_T0}, s{S_T0}, s{S_T1}")
    A("v_lshrrev_b32 v1, 3, v2")
    A("v_and_b32 v5, 7, v2")
    A("v_xor_b32 v5, v5, v1")
    A("v_lshlrev_b32 v5, 4, v5")
    A(f"v_add_u32 v1, s{S_T0}, v1")
    A(f"s_movk_i32 s{S_T1}, 1280")
    A(f"v_mul_lo_u32 v1, v1, s{S_T1}")
    A(f"v_add_u32 v{VXO}, v1, v5")
    A(f"v_add_u32 v{VXO+1}, {8*1280}, v{VXO}")
    A(f"v_add_u32 v{VXO+2}, {16*1280}, v{VXO}")
    for i in range(3):
        if i == 0:
            A(f"s_mov_b32 s{S_T0}, s{S_W}")
        elif i == 1:
            A(f"s_add_u32 s{S_T0}, s{S_W}, 8")
        else:
            A(f"s_add_u32 s{S_T0}, s{S_W}, 16")
            A(f"s_add_u32 s{S_T1}, s{S_W}, 8")
            A(f"s_cmp_lt_u32 s{S_W}, 4")
            A(f"s_cselect_b32 s{S_T0}, s{S_T0}, s{S_T1}")
        A(f"s_lshl_b32 s{S_T0}, s{S_T0}, 6")
        A(f"v_add_u32 v1, s{S_T0}, v2")
        A(f"s_movk_i32 s{S_T1}, 3277")
        A(f"v_mul_lo_u32 v5, v1, s{S_T1}")
        A("v_lshrrev_b32 v5, 16, v5")
        A("v_mul_u32_u24 v12, 20, v5")
        A("v_sub_u32 v12, v1, v12")
        A("v_lshrrev_b32 v13, 3, v5")
        A("v_and_b32 v13, 1, v13")
        A("v_lshlrev_b32 v13, 1, v13")
        A("v_xor_b32 v12, v12, v13")
        A(f"v_mul_lo_u32 v5, v5, s{S_RS}")
        A("v_lshlrev_b32 v13, 4, v12")
        A(f"v_add_u32 v5, v5, v13")
        A(f"v_add_u32 v5, s{S_CB}, v5")
        A(f"s_cmp_lg_u32 s{S_TYPE}, 0")
        A(f"s_cbranch_scc1 K1_WOFF_DONE{i}")
        A("v_cmp_le_u32 vcc, 10, v12")
        A("v_mov_b32 v13, 0")
        A("v_mov_b32 v14, 10")
        A("v_cndmask_b32 v13, v13, v14, vcc")
        A("v_sub_u32 v14, v12, v13")
        A("v_lshlrev_b32 v13, 3, v13")
        A("v_sub_u32 v5, v5, v13")
        A("v_cmp_le_u32 vcc, 5, v14")
        A("v_mov_b32 v13, 1280")
        A("v_mov_b32 v14, 2480")
        A("v_cndmask_b32 v13, v13, v14, vcc")
        A("v_add_u32 v5, v5, v13")
        A.label(f"K1_WOFF_DONE{i}")
        A(f"v_mov_b32 v{VWO+i}, v5")
    VB = 12
    A(f"s_and_b32 s{S_T0}, s{S_W}, 3")
    A(f"s_lshr_b32 s{S_T1}, s{S_W}, 2")
    A(f"s_mul_i32 s{S_T2}, s{S_T0}, 48")
    A(f"v_add_u32 v1, s{S_T2}, v4")
    A("v_lshlrev_b32 v1, 7, v1")
    A("v_and_b32 v5, 7, v2")
    A("v_xor_b32 v24, v3, v5")
    A("v_lshlrev_b32 v24, 4, v24")
    A(f"v_add_u32 v{VB}, v1, v24")
    A(f"v_xor_b32 v{VB+1}, 64, v{VB}")
    A("v_lshlrev_b32 v1, 3, v3")
    A("v_lshrrev_b32 v5, 2, v4")
    A("v_add_u32 v1, v1, v5")
    A("v_mul_u32_u24 v1, 320, v1")
    A("v_and_b32 v5, 3, v2")
    A("v_lshlrev_b32 v5, 3, v5")
    A("v_add_u32 v1, v1, v5")
    A(f"s_mul_i32 s{S_T2}, s{S_T1}, 160")
    A(f"v_add_u32 v1, s{S_T2}, v1")
    A("v_and_b32 v5, 1, v3")
    A("v_lshlrev_b32 v5, 5, v5")
    A("v_add_u32 v24, v1, v5")
    A("v_sub_u32 v25, v1, v5")
    A(f"s_cmp_eq_u32 s{S_T1}, 0")
    A("s_cbranch_scc1 K1_NH0")
    A(f"v_mov_b32 v{VB+2}, v25")
    A(f"v_mov_b32 v{VB+3}, v24")
    A("s_branch K1_NHD")
    A.label("K1_NH0")
    A(f"v_mov_b32 v{VB+2}, v24")
    A(f"v_mov_b32 v{VB+3}, v25")
    A.label("K1_NHD")
    VB1 = 148
    A(f"s_cmp_lg_u32 s{S_TYPE}, 2")
    A("s_cbranch_scc1 K1_NOB1")
    A(f"s_mul_i32 s{S_T2}, s{S_T1}, 160")
    A(f"s_add_u32 s{S_T2}, s{S_T2}, s{S_CB}")
    A("v_lshlrev_b32 v1, 3, v3")
    A(f"v_add_u32 v1, s{S_T2}, v1")
    for j in range(5):
        A(f"buffer_load_dwordx2 v[{VB1+2*j}:{VB1+2*j+1}], v1, s[{SB}:{SB+3}], 0 offen offset:{32*j}")
    A.label("K1_NOB1")

    FR = [24, 56]
    ACC = 88
    def acc(mt, j):
        return ACC + 4 * (mt * 5 + j)
    for i in range(60):
        A(f"v_mov_b32 v{ACC+i}, 0")

    S_M = 60 if not STAMP else 86
    S_S, S_DS, S_DD, S_RD = 54, 55, 58, 59
    S_M0 = 96
    VX0, VX1, VW0, VW1 = VB, VB + 1, VB + 2, VB + 3

    def dma_instr(i):
        if i < 3:
            return f"buffer_load_dwordx4 v{VXO+i}, s[{SX}:{SX+3}], s{S_XOFF} offen lds"
        return f"buffer_load_dwordx4 v{VWO+i-3}, s[{SW}:{SW+3}], s{S_WOFF} offen lds"

    def set_m0s():
        for i in range(3):
            A(f"s_add_u32 s{S_M0+i}, s{S_MX+i}, s{S_DS}")
            A(f"s_add_u32 s{S_M0+3+i}, s{S_MW+i}, s{S_DS}")

    def adv_group():
        A(f"s_add_u32 s{S_XOFF}, s{S_XOFF}, 128")
        A(f"s_add_u32 s{S_WOFF}, s{S_WOFF}, s{S_WSTR}")
        A(f"s_add_u32 s{S_DS}, s{S_DS}, {K1_SLOT}")
        A(f"s_cmp_eq_u32 s{S_DS}, {3*K1_SLOT}")
        A(f"s_cselect_b32 s{S_DS}, 0, s{S_DS}")

    def frag_reads(ks):
        fs = FR[ks ^ 1] if False else None
        return None

    def reads(ks, fs):
        out = []
        for mt in range(3):
            out.append(f"ds_read_b128 v[{fs+4*mt}:{fs+4*mt+3}], v{VB+ks} offset:{mt*2048}")
        for j in range(5):
            for hh in range(2):
                off = K1_WOFF + (32 * ks + 4 * hh) * 320 + 32 * j
                r = fs + 12 + 4 * j + 2 * hh
                out.append(f"ds_read_b64_tr_b16 v[{r}:{r+1}], v{VB+2+(j&1)} offset:{off}")
        return out

    def mfmas(fs, swapped):
        mf = []
        for j in range(5):
            for mt in range(3):
                x = f"v[{fs+4*mt}:{fs+4*mt+3}]"
                w = f"v[{fs+12+4*j}:{fs+12+4*j+3}]"
                a = f"v[{acc(mt,j)}:{acc(mt,j)+3}]"
                mf.append(f"v_mfma_f32_16x16x32_bf16 {a}, {w}, {x}, {a}" if swapped else f"v_mfma_f32_16x16x32_bf16 {a}, {x}, {w}, {a}")
        return mf

    def phase(mf, rd, dmas, tag):
        k = 0
        dpos = {2: 0, 7: 1, 12: 2}
        for i, m in enumerate(mf):
            A(m)
            if k < len(rd):
                A(rd[k]); k += 1
            if i in dpos and dmas:
                d = dmas[dpos[i]]
                A(f"s_cbranch_scc0 {tag}_{d}")
                A(f"s_mov_b32 m0, s{S_M0+d}")
                A("s_nop 0")
                A(dma_instr(d))
                A.label(f"{tag}_{d}")
        while k < len(rd):
            A(rd[k]); k += 1

    def mainloop(swapped, tag):
        A(f"s_mov_b32 s{S_DS}, 0")
        A.stamp(1)
        for g in range(3):
            set_m0s()
            for d in range(6 if g < 2 else 3):
                A(f"s_mov_b32 m0, s{S_M0+d}")
                A("s_nop 0")
                A(dma_instr(d))
            if g < 2:
                adv_group()
        A("s_waitcnt vmcnt(9)")
        A.stamp(2)
        A("s_barrier")
        A.stamp(3)
        for r in reads(0, FR[0]):
            A(r)
        A(f"s_mov_b32 s{S_S}, 0")
        A.label(f"K1_LOOP_{tag}")
        if STAMP:
            for q in (2, 4, 6, 8):
                A(f"s_cmp_lg_u32 s{S_S}, {q}")
                A(f"s_cbranch_scc1 K1_ST{tag}{q}")
                A.stamp(3 + q // 2)
                A.label(f"K1_ST{tag}{q}")
        A("s_waitcnt lgkmcnt(0)")
        A(f"s_cmp_lt_u32 s{S_S}, 8")
        phase(mfmas(FR[0], swapped), reads(1, FR[1]), [3, 4, 5], f"K1A{tag}")
        A(f"s_cbranch_scc0 K1_NOADV_{tag}")
        adv_group()
        set_m0s()
        A.label(f"K1_NOADV_{tag}")
        A("s_waitcnt lgkmcnt(0)")
        A(f"s_cmp_eq_u32 s{S_S}, 9")
        A(f"s_cbranch_scc1 K1_LAST_{tag}")
        A(f"s_cmp_lt_u32 s{S_S}, 8")
        A(f"s_cbranch_scc1 K1_W6_{tag}")
        A("s_waitcnt vmcnt(0)")
        A.label(f"K1_W6_{tag}")
        A("s_waitcnt vmcnt(6)")
        A("s_barrier")
        A(f"s_add_u32 s{S_RD}, s{S_RD}, 1")
        A(f"s_cmp_eq_u32 s{S_RD}, 3")
        A(f"s_cselect_b32 s{S_RD}, 0, s{S_RD}")
        A(f"s_mov_b32 s{S_T0}, {K1_SLOT}")
        A(f"s_cselect_b32 s{S_T0}, {(-2*K1_SLOT) & 0xffffffff}, s{S_T0}")
        for i in range(4):
            A(f"v_add_u32 v{VB+i}, s{S_T0}, v{VB+i}")
        A(f"s_cmp_lt_u32 s{S_S}, 7")
        phase(mfmas(FR[1], swapped), reads(0, FR[0]), [0, 1, 2], f"K1B{tag}")
        A(f"s_add_u32 s{S_S}, s{S_S}, 1")
        A(f"s_branch K1_LOOP_{tag}")
        A.label(f"K1_LAST_{tag}")
        for m in mfmas(FR[1], swapped):
            A(m)
        A("s_nop 7")
        A("s_nop 7")
        A.stamp(8)

    A(f"s_mov_b32 s{S_RD}, 0")
    A(f"s_cmp_eq_u32 s{S_TYPE}, 0")
    A("s_cbranch_scc1 K1_KV")
    mainloop(True, "qh")
    A("s_barrier")
    A(f"s_and_b32 s{S_T0}, s{S_W}, 3")
    A(f"s_lshr_b32 s{S_T1}, s{S_W}, 2")
    S_MW_, S_NH_, S_IT, S_CP = 54, 55, 58, 96
    A(f"s_mov_b32 s{S_MW_}, s{S_T0}")
    A(f"s_mov_b32 s{S_NH_}, s{S_T1}")
    A(f"s_mov_b32 s{S_IT}, 0")
    T = 24
    A(f"s_cmp_eq_u32 s{S_TYPE}, 2")
    A("s_cbranch_scc1 K1_EPI_H")
    A(f"s_mul_i32 s{S_T2}, s{S_T0}, 48")
    A(f"v_add_u32 v1, s{S_T2}, v4")
    A("v_mul_u32_u24 v1, 336, v1")
    A(f"s_mul_i32 s{S_T2}, s{S_T1}, 160")
    A("v_lshlrev_b32 v5, 3, v3")
    A("v_add_u32 v1, v1, v5")
    A(f"v_add_u32 v1, s{S_T2}, v1")
    A(f"s_mov_b32 s96, {LOG2E}")
    A(f"s_mov_b32 s97, {LOG2E}")
    A(f"s_mov_b32 s98, {f32(1e-6)}")
    A(f"s_mov_b32 s99, {f32(1e-6)}")
    def phi_block(a0, n, T):
        for r in range(n):
            A(f"v_min_f32 v{T+r}, 0, v{a0+r}")
        for r in range(0, n, 2):
            A(f"v_pk_mul_f32 v[{T+r}:{T+r+1}], v[{T+r}:{T+r+1}], s[96:97]")
        for r in range(n):
            A(f"v_exp_f32 v{T+r}, v{T+r}")
        for r in range(n):
            A(f"v_max_f32 v{T+n+r}, 0, v{a0+r}")
        for r in range(0, n, 2):
            A(f"v_pk_add_f32 v[{T+n+r}:{T+n+r+1}], v[{T+n+r}:{T+n+r+1}], s[98:99]")
        for r in range(0, n, 2):
            A(f"v_pk_add_f32 v[{T+r}:{T+r+1}], v[{T+r}:{T+r+1}], v[{T+n+r}:{T+n+r+1}]")
    for mt in range(3):
        phi_block(acc(mt, 0), 20, 24)
        for j in range(5):
            A(f"v_cvt_pk_bf16_f32 v{64+2*j}, v{24+4*j}, v{25+4*j}")
            A(f"v_cvt_pk_bf16_f32 v{65+2*j}, v{26+4*j}, v{27+4*j}")
        for j in range(5):
            A(f"ds_write_b64 v1, v[{64+2*j}:{65+2*j}] offset:{mt*16*336 + 32*j}")
    A("s_waitcnt lgkmcnt(0)")
    A("s_barrier")
    A(f"s_mul_i32 s{S_T2}, s{S_RT}, {192*1280}")
    A(f"s_add_u32 s{S_T2}, s{S_T2}, s{S_CB}")
    for n in range(8):
        if n == 7:
            A(f"s_cmp_ge_u32 s{S_W}, 4")
            A("s_cbranch_scc1 K1_QST")
        A(f"s_add_u32 s{S_T0}, s{S_W}, {8*n}")
        A(f"s_lshl_b32 s{S_T0}, s{S_T0}, 6")
        A(f"v_add_u32 v5, s{S_T0}, v2")
        A("v_mul_u32_u24 v6, 3277, v5")
        A("v_lshrrev_b32 v6, 16, v6")
        A("v_mul_u32_u24 v7, 20, v6")
        A("v_sub_u32 v7, v5, v7")
        A("v_lshlrev_b32 v7, 4, v7")
        A("v_mul_u32_u24 v8, 336, v6")
        A("v_add_u32 v8, v8, v7")
        A(f"ds_read_b128 v[{24+4*n}:{27+4*n}], v8")
        A("v_mul_u32_u24 v6, 1280, v6")
        A(f"v_add_u32 v{72+n}, v6, v7")
    A.label("K1_QST")
    A("s_waitcnt lgkmcnt(0)")
    for n in range(8):
        if n == 7:
            A(f"s_cmp_ge_u32 s{S_W}, 4")
            A("s_cbranch_scc1 K1_END")
        A(f"buffer_store_dwordx4 v[{24+4*n}:{27+4*n}], v{72+n}, s[{SO}:{SO+3}], s{S_T2} offen")
    A("s_branch K1_END")
    A.label("K1_EPI_H")
    c1 = -2.0 * 0.7978845608028654 * 1.4426950408889634
    A(f"s_mov_b32 s{S_C1}, {f32(c1)}")
    A(f"s_mov_b32 s{S_C2}, {f32(c1 * 0.044715)}")
    A(f"v_mov_b32 v8, s{S_C1}")
    for j in range(5):
        A(f"v_lshlrev_b32 v{60+4*j}, 16, v{VB1+2*j}")
        A(f"v_and_b32 v{60+4*j+1}, 0xffff0000, v{VB1+2*j}")
        A(f"v_lshlrev_b32 v{60+4*j+2}, 16, v{VB1+2*j+1}")
        A(f"v_and_b32 v{60+4*j+3}, 0xffff0000, v{VB1+2*j+1}")
    A("v_lshrrev_b32 v5, 2, v4")
    A("v_sub_u32 v5, 0, v5")
    A("v_and_b32 v5, 3, v5")
    A("v_lshrrev_b32 v6, 1, v3")
    A("v_xor_b32 v5, v5, v6")
    A("v_lshlrev_b32 v5, 4, v5")
    A("v_lshlrev_b32 v6, 6, v4")
    A("v_add_u32 v5, v5, v6")
    A("v_and_b32 v6, 1, v3")
    A("v_lshlrev_b32 v6, 3, v6")
    A("v_add_u32 v5, v5, v6")
    A(f"s_lshl_b32 s{S_T2}, s{S_NH_}, 5")
    A(f"v_xor_b32 v6, s{S_T2}, v5")
    A("v_xor_b32 v7, 32, v6")
    for j in range(5):
        A(f"s_mul_i32 s{S_T2}, s{S_NH_}, 80")
        A(f"s_add_u32 s{S_T2}, s{S_T2}, {16*j}")
        A(f"s_lshr_b32 s{S_T2}, s{S_T2}, 5")
        A(f"s_lshl_b32 s{S_CP+j}, s{S_T2}, 12")
    A(f"s_mul_i32 s{S_C3}, s{S_MW_}, 48")
    A(f"s_mov_b32 s90, {f32(c1)}")
    A(f"s_mov_b32 s91, {f32(c1)}")
    A(f"s_mov_b32 s92, {f32(c1 * 0.044715)}")
    A(f"s_mov_b32 s93, {f32(c1 * 0.044715)}")
    A(f"s_mov_b32 s94, {f32(30.0)}")
    A("v_mov_b32 v80, s90")
    A("v_mov_b32 v81, s90")
    A("v_mov_b32 v82, 1.0")
    A("v_mov_b32 v83, 1.0")
    for mt in range(3):
        A(f"s_lshr_b32 s{S_T0}, s{S_C3}, 6")
        A(f"s_mul_i32 s{S_T0}, s{S_T0}, 20480")
        A(f"s_and_b32 s{S_T1}, s{S_C3}, 63")
        A(f"s_lshl_b32 s{S_T1}, s{S_T1}, 6")
        A(f"s_add_u32 s{S_T0}, s{S_T0}, s{S_T1}")
        A(f"v_add_u32 v9, s{S_T0}, v6")
        A(f"v_add_u32 v10, s{S_T0}, v7")
        a0 = acc(mt, 0)
        T = 24
        P = lambda b, r: f"v[{b+r}:{b+r+1}]"
        for r in range(0, 20, 2):
            A(f"v_pk_add_f32 {P(a0,r)}, {P(a0,r)}, {P(60,r)}")
        for r in range(0, 20, 2):
            A(f"v_pk_mul_f32 {P(T,r)}, {P(a0,r)}, {P(a0,r)}")
        for r in range(0, 20, 2):
            A(f"v_pk_fma_f32 {P(T,r)}, {P(T,r)}, s[92:93], v[80:81]")
        for r in range(0, 20, 2):
            A(f"v_pk_mul_f32 {P(T,r)}, {P(T,r)}, {P(a0,r)}")
        for r in range(20):
            A(f"v_min_f32 v{T+r}, 30.0, v{T+r}") if False else A(f"v_min_f32 v{T+r}, s94, v{T+r}")
        for r in range(20):
            A(f"v_exp_f32 v{T+r}, v{T+r}")
        for j in range(5):
            A(f"v_add_u32 v{11+j}, s{S_CP+j}, v{9+(j&1)}")
        for r in range(0, 20, 2):
            A(f"v_pk_add_f32 {P(T,r)}, {P(T,r)}, v[82:83]")
        for j in range(5):
            b = T + 4 * j
            A(f"v_mul_f32 v{44+2*j}, v{b}, v{b+1}")
            A(f"v_mul_f32 v{45+2*j}, v{b+2}, v{b+3}")
        for j in range(5):
            A(f"v_mul_f32 v{54+j}, v{44+2*j}, v{45+2*j}")
        for j in range(5):
            A(f"v_rcp_f32 v{54+j}, v{54+j}")
        A("s_nop 0")
        for j in range(5):
            A(f"v_mul_f32 v{84+(j&1)*2}, v{54+j}, v{45+2*j}")
            A(f"v_mul_f32 v{85+(j&1)*2}, v{54+j}, v{44+2*j}")
            b = T + 4 * j
            q = 84 + (j & 1) * 2
            A(f"v_mul_f32 v{44+2*j}, v{q}, v{b+1}")
            A(f"v_mul_f32 v{45+2*j}, v{q}, v{b}")
            A(f"v_mul_f32 v{b}, v{44+2*j}, v{a0+4*j}")
            A(f"v_mul_f32 v{b+1}, v{45+2*j}, v{a0+4*j+1}")
            A(f"v_mul_f32 v{44+2*j}, v{q+1}, v{b+3}")
            A(f"v_mul_f32 v{45+2*j}, v{q+1}, v{b+2}")
            A(f"v_mul_f32 v{b+2}, v{44+2*j}, v{a0+4*j+2}")
            A(f"v_mul_f32 v{b+3}, v{45+2*j}, v{a0+4*j+3}")
        for j in range(5):
            A(f"v_cvt_pk_bf16_f32 v{44+2*j}, v{T+4*j}, v{T+4*j+1}")
            A(f"v_cvt_pk_bf16_f32 v{45+2*j}, v{T+4*j+2}, v{T+4*j+3}")
        for j in range(5):
            A(f"ds_write_b64 v{11+j}, v[{44+2*j}:{45+2*j}]")
        A(f"s_add_u32 s{S_C3}, s{S_C3}, 16")
    A("s_waitcnt lgkmcnt(0)")
    A.stamp(10)
    A("s_barrier")
    A("v_lshlrev_b32 v1, 4, v2")
    A(f"s_sub_u32 s{S_C1}, s{S_CT}, 12")
    A(f"s_mul_i32 s{S_C1}, s{S_C1}, 5")
    A(f"s_mul_i32 s{S_C2}, s{S_RT}, 3")
    for n in range(8):
        A(f"s_add_u32 s{S_T0}, s{S_W}, {8*n}")
        A(f"s_lshl_b32 s{S_T1}, s{S_T0}, 10")
        A(f"v_add_u32 v5, s{S_T1}, v1")
        A(f"ds_read_b128 v[{24+4*n}:{27+4*n}], v5")
    A("s_waitcnt lgkmcnt(0)")
    for n in range(8):
        A(f"s_add_u32 s{S_T0}, s{S_W}, {8*n}")
        A(f"s_cmp_ge_u32 s{S_T0}, 60")
        A("s_cbranch_scc1 K1_END")
        A(f"s_lshr_b32 s{S_T1}, s{S_T0}, 2")
        A(f"s_mul_i32 s{S_T2}, s{S_T1}, 13")
        A(f"s_lshr_b32 s{S_T2}, s{S_T2}, 6")
        A(f"s_mul_i32 s{S_C3}, s{S_T2}, 5")
        A(f"s_sub_u32 s{S_T1}, s{S_T1}, s{S_C3}")
        A(f"s_add_u32 s{S_T1}, s{S_T1}, s{S_C1}")
        A(f"s_cmp_ge_u32 s{S_T1}, 54")
        A(f"s_cbranch_scc1 K1_HSK{n}")
        A(f"s_add_u32 s{S_T2}, s{S_T2}, s{S_C2}")
        A(f"s_mul_i32 s{S_T2}, s{S_T2}, 54")
        A(f"s_add_u32 s{S_T2}, s{S_T2}, s{S_T1}")
        A(f"s_lshl_b32 s{S_T2}, s{S_T2}, 12")
        A(f"s_and_b32 s{S_T0}, s{S_T0}, 3")
        A(f"s_lshl_b32 s{S_T0}, s{S_T0}, 10")
        A(f"s_add_u32 s{S_T2}, s{S_T2}, s{S_T0}")
        A(f"buffer_store_dwordx4 v[{24+4*n}:{27+4*n}], v1, s[{SO}:{SO+3}], s{S_T2} offen")
        A.label(f"K1_HSK{n}")
    A("s_branch K1_END")

    A.label("K1_KV")
    mainloop(False, "kv")
    A(f"s_and_b32 s{S_T0}, s{S_W}, 3")
    A(f"s_mul_i32 s{S_T2}, s{S_T0}, 48")
    A(f"s_mul_i32 s{S_C1}, s{S_RT}, 192")
    A(f"s_add_u32 s{S_T2}, s{S_T2}, s{S_C1}")
    A(f"s_mov_b32 s{S_C1}, {LOG2E}")
    A(f"s_mov_b32 s{S_C2}, {f32(1e-6)}")
    KV = 24
    for i in range(40):
        A(f"v_mov_b32 v{KV+i}, 0")
    A("v_mov_b32 v64, 0x3f803f80")
    A("v_mov_b32 v65, 0x3f803f80")
    A("v_cmp_gt_u32 s[54:55], 8, v4")
    PK = 66
    T = 148
    A(f"s_mov_b32 s96, {LOG2E}")
    A(f"s_mov_b32 s97, {LOG2E}")
    A(f"s_mov_b32 s98, {f32(1e-6)}")
    A(f"s_mov_b32 s99, {f32(1e-6)}")
    pairs = [(0, 2), (0, 3), (1, 2), (1, 3), (1, 4), (2, 3), (2, 4)]
    for mt in range(3):
        A(f"s_add_u32 s{S_T0}, s{S_T2}, {16*mt}")
        A(f"s_cmp_ge_u32 s{S_T0}, 2048")
        A("s_cbranch_scc1 K1_KV_RED")
        phi_block(acc(mt, 0), 8, T)
        phi_block(acc(mt, 2), 4, 76)
        for r in range(4):
            A(f"v_cndmask_b32 v{76+r}, v{acc(mt,2)+r}, v{76+r}, s[54:55]")
        for j in range(5):
            src = T + 4 * j if j <= 1 else (76 if j == 2 else acc(mt, j))
            A(f"v_cvt_pk_bf16_f32 v{PK+2*j}, v{src}, v{src+1}")
            A(f"v_cvt_pk_bf16_f32 v{PK+2*j+1}, v{src+2}, v{src+3}")
        A("s_nop 1")
        for pi, (a, b) in enumerate(pairs):
            d = f"v[{KV+4*pi}:{KV+4*pi+3}]"
            A(f"v_mfma_f32_16x16x16_bf16 {d}, v[{PK+2*a}:{PK+2*a+1}], v[{PK+2*b}:{PK+2*b+1}], {d}")
        for a in range(3):
            d = f"v[{KV+4*(7+a)}:{KV+4*(7+a)+3}]"
            A(f"v_mfma_f32_16x16x16_bf16 {d}, v[{PK+2*a}:{PK+2*a+1}], v[64:65], {d}")
        A("s_nop 7")
    A.label("K1_KV_RED")
    A("s_nop 7")
    A("s_nop 7")
    A("s_barrier")
    A(f"s_mul_i32 s{S_T0}, s{S_W}, 10240")
    A("v_lshlrev_b32 v1, 4, v2")
    A(f"v_add_u32 v5, s{S_T0}, v1")
    for i in range(10):
        A(f"ds_write_b128 v5, v[{KV+4*i}:{KV+4*i+3}] offset:{1024*i}")
    A("s_waitcnt lgkmcnt(0)")
    A("s_barrier")
    A(f"s_mul_i32 s{S_C1}, s{S_RT}, {KVC_RT}")
    A(f"s_mul_i32 s{S_C2}, s{S_CT}, 6400")
    A(f"s_add_u32 s{S_C2}, s{S_C2}, s{S_C1}")
    A(f"s_mul_i32 s{S_C3}, s{S_CT}, 320")
    A(f"s_add_u32 s{S_C3}, s{S_C3}, s{S_C1}")
    A(f"s_add_u32 s{S_C3}, s{S_C3}, {51200 - 6400}")
    A("v_mov_b32 v30, 0x7fffffff")
    for n in range(4):
        A(f"v_add_u32 v8, {512*n}, v0")
        A("v_cmp_gt_u32 vcc, 1600, v8")
        A("s_nop 1")
        A("s_mov_b64 s[56:57], vcc")
        A("v_mul_u32_u24 v9, 41944, v8")
        A("v_lshrrev_b32 v9, 24, v9")
        A("v_mul_u32_u24 v10, 400, v9")
        A("v_sub_u32 v10, v8, v10")
        A("v_mul_u32_u24 v11, 3277, v10")
        A("v_lshrrev_b32 v11, 16, v11")
        A("v_mul_u32_u24 v12, 20, v11")
        A("v_sub_u32 v12, v10, v12")
        A("v_and_b32 v13, 1, v9")
        A("v_mul_u32_u24 v13, 20, v13")
        A("v_add_u32 v11, v11, v13")
        A("v_add_u32 v12, v12, v13")
        A("v_add_u32 v12, 40, v12")
        A("v_lshrrev_b32 v9, 1, v9")
        A("v_subrev_u32 v14, 1600, v8")
        A("v_cmp_le_u32 vcc, 40, v14")
        A("v_mov_b32 v15, 0")
        A("v_mov_b32 v16, 1")
        A("v_cndmask_b32 v15, v15, v16, vcc")
        A("v_mul_u32_u24 v16, 40, v15")
        A("v_sub_u32 v14, v14, v16")
        A("v_cndmask_b32 v9, v15, v9, s[56:57]")
        A("v_cndmask_b32 v11, v14, v11, s[56:57]")
        A("v_lshrrev_b32 v13, 4, v11")
        A("v_lshlrev_b32 v14, 1, v13")
        A("v_lshrrev_b32 v15, 4, v12")
        A("v_add_u32 v14, v14, v15")
        A("v_subrev_u32 v14, 2, v14")
        A("v_add_u32 v13, 7, v13")
        A("v_cndmask_b32 v13, v13, v14, s[56:57]")
        A("v_and_b32 v14, 15, v12")
        A("v_cndmask_b32 v14, 0, v14, s[56:57]")
        A("v_bfe_u32 v15, v11, 2, 2")
        A("v_lshlrev_b32 v15, 4, v15")
        A("v_add_u32 v14, v14, v15")
        A("v_lshlrev_b32 v14, 4, v14")
        A("v_and_b32 v15, 3, v11")
        A("v_lshlrev_b32 v15, 2, v15")
        A("v_add_u32 v14, v14, v15")
        A("v_lshlrev_b32 v13, 10, v13")
        A("v_add_u32 v14, v14, v13")
        A("v_mul_u32_u24 v9, 40960, v9")
        A("v_add_u32 v14, v14, v9")
        A("v_and_b32 v14, 0xffff, v14")
        for m in range(4):
            A(f"ds_read_b32 v{20+m}, v14 offset:{10240*m}")
        A("v_lshlrev_b32 v15, 2, v8")
        A(f"v_add_u32 v16, s{S_C2}, v15")
        A(f"v_add_u32 v17, s{S_C3}, v15")
        A("v_cndmask_b32 v16, v17, v16, s[56:57]")
        if n == 3:
            A("v_cmp_gt_u32 vcc, 1680, v8")
            A("s_nop 1")
            A("v_cndmask_b32 v16, v30, v16, vcc")
        A("s_waitcnt lgkmcnt(0)")
        A("v_add_f32 v20, v20, v21")
        A("v_add_f32 v22, v22, v23")
        A("v_add_f32 v20, v20, v22")
        A(f"buffer_store_dword v20, v16, s[{SO}:{SO+3}], 0 offen")
    A.label("K1_END")
    A.stamp(9)
    A.stamp_flush(0, 44, 45, 166)
    A.label("K1_EXIT")
    A("s_endpgm")
    kd(A, name, 168)

K2_LDS = 37888
def gen_k2(A):
    name = "k2_small_kernel"
    khead(A, name)
    SKV, SWO, SPQ, SPS, SXX, SGW, SM, SOM = 8, 12, 16, 20, 24, 28, 32, 36
    L_PQ, L_X, L_GW, L_Z, L_KV, L_OUT = 0, 10240, 20480, 22528, 25088, 27136
    A.stamp(0)
    A("s_cmp_ge_u32 s2, 256")
    A("s_cbranch_scc1 K2_EXIT")
    A("s_load_dwordx2 s[40:41], s[0:1], 0")
    A("s_load_dwordx2 s[42:43], s[0:1], 16")
    A("s_load_dwordx2 s[52:53], s[0:1], 48")
    A("s_load_dwordx2 s[44:45], s[0:1], 64")
    A("s_load_dwordx2 s[46:47], s[0:1], 88")
    A("v_lshrrev_b32 v9, 6, v0")
    A("v_and_b32 v10, 63, v0")
    A("v_lshlrev_b32 v10, 4, v10")
    A("v_readfirstlane_b32 s3, v9")
    A("s_waitcnt lgkmcnt(0)")
    srd(A, SXX, 40, 41, 2048 * 640 * 2)
    srd(A, SWO, 42, 43, 640 * 640 * 2)
    srd(A, SGW, 44, 45, 1280)
    srd(A, 88, 52, 53, 1728 * 640 * 2)
    def wssrd(d, off, n):
        A(f"s_add_u32 s48, s46, {off}")
        A("s_addc_u32 s49, s47, 0")
        srd(A, d, 48, 49, n)
    wssrd(SKV, WS_KVP, KVP_BYTES)
    wssrd(SPQ, WS_PQ, 2048 * 640 * 2)
    wssrd(SPS, WS_PQS, 2048 * 640 * 2)
    wssrd(SM, WS_M, 640 * 640 * 2)
    wssrd(SOM, WS_OMG, 8192)
    wssrd(84, WS_W2B, 1728 * 640 * 2)
    A("s_lshr_b32 s4, s2, 3")
    A("s_and_b32 s5, s2, 7")
    A("v_lshlrev_b32 v8, 4, v0")
    A("v_mov_b32 v12, 0x7fffffff")
    A("v_add_u32 v11, 51200, v8")
    A("v_cmp_gt_u32 vcc, 160, v0")
    A("s_mul_i32 s6, s4, 1600")
    A("v_add_u32 v13, s6, v8")
    A("v_cndmask_b32 v11, v12, v11, vcc")
    A("v_cmp_gt_u32 vcc, 100, v0")
    A("s_nop 1")
    A("v_cndmask_b32 v13, v12, v13, vcc")
    A("s_cmp_ge_u32 s3, 3")
    A("s_cbranch_scc1 K2_NOPART")
    for rt in range(11):
        A(f"s_mov_b32 s50, {rt*KVC_RT}")
        A(f"buffer_load_dwordx4 v[{20+4*rt}:{23+4*rt}], v11, s[{SKV}:{SKV+3}], s50 offen")
    A("s_cmp_ge_u32 s3, 2")
    A("s_cbranch_scc1 K2_NOPART")
    for rt in range(11):
        A(f"s_mov_b32 s50, {rt*KVC_RT}")
        A(f"buffer_load_dwordx4 v[{180+4*rt}:{183+4*rt}], v13, s[{SKV}:{SKV+3}], s50 offen")
    A.label("K2_NOPART")
    A("s_mul_i32 s6, s2, 10240")
    for n in range(3):
        if n == 2:
            A("s_cmp_ge_u32 s3, 2")
            A("s_cbranch_scc1 K2_DMAD")
        A(f"s_add_u32 s7, s3, {4*n}")
        A("s_lshl_b32 s7, s7, 10")
        A("s_add_u32 s50, s6, s7")
        A(f"s_add_u32 m0, s7, {L_PQ}")
        A("s_nop 0")
        A(f"buffer_load_dwordx4 v10, s[{SPQ}:{SPQ+3}], s50 offen lds")
        A(f"s_add_u32 m0, s7, {L_X}")
        A("s_nop 0")
        A(f"buffer_load_dwordx4 v10, s[{SXX}:{SXX+3}], s50 offen lds")
        if n == 0:
            A("s_cmp_ge_u32 s3, 2")
            A("s_cbranch_scc1 K2_NOGW")
            A(f"s_add_u32 m0, s7, {L_GW}")
            A("s_nop 0")
            A(f"buffer_load_dwordx4 v10, s[{SGW}:{SGW+3}], s7 offen lds")
            A.label("K2_NOGW")
    A.label("K2_DMAD")
    A("v_mul_u32_u24 v1, 6554, v0")
    A("v_lshrrev_b32 v1, 16, v1")
    A("v_mul_u32_u24 v2, 10, v1")
    A("v_sub_u32 v2, v0, v2")
    A("s_mul_i32 s6, s4, 25600")
    A("s_mul_i32 s7, s5, 160")
    A("s_add_u32 s6, s6, s7")
    A("v_lshlrev_b32 v3, 4, v2")
    A("v_add_u32 v3, s6, v3")
    for e in range(20):
        A(f"s_mov_b32 s50, {e*1280}")
        A(f"buffer_load_dwordx4 v[{100+4*e}:{103+4*e}], v3, s[{SWO}:{SWO+3}], s50 offen")
    A("s_lshl_b32 s6, s2, 3")
    for n in range(3):
        A(f"v_add_u32 v8, {256*n}, v0")
        A("v_mul_u32_u24 v14, 820, v8")
        A("v_lshrrev_b32 v14, 16, v14")
        A("v_mul_u32_u24 v15, 80, v14")
        A("v_sub_u32 v15, v8, v15")
        A(f"v_mov_b32 v{96+n}, v14") if False else None
        A("v_add_u32 v14, s6, v14")
        A("v_mul_u32_u24 v16, 1280, v14")
        A("v_lshlrev_b32 v17, 4, v15")
        A("v_add_u32 v16, v16, v17")
        if n == 2:
            A("v_cmp_gt_u32 vcc, 128, v0")
            A("s_nop 1")
            A("v_cndmask_b32 v16, v12, v16, vcc")
        A(f"buffer_load_dwordx4 v[{228+4*n}:{231+4*n}], v16, s[88:91], 0 offen")
        A("v_mul_u32_u24 v17, 6554, v15")
        A("v_lshrrev_b32 v17, 16, v17")
        A("v_mul_u32_u24 v18, 10, v17")
        A("v_sub_u32 v18, v15, v18")
        A("v_mul_u32_u24 v17, 54, v17")
        A("v_lshrrev_b32 v19, 5, v14")
        A("v_add_u32 v17, v17, v19")
        A("v_mul_u32_u24 v17, 5120, v17")
        A("v_and_b32 v19, 31, v14")
        A("v_lshrrev_b32 v16, 3, v19")
        A("v_and_b32 v16, 1, v16")
        A("v_lshlrev_b32 v16, 2, v16")
        A("v_xor_b32 v19, v19, v16")
        A("v_mul_u32_u24 v19, 160, v19")
        A("v_add_u32 v17, v17, v19")
        A("v_lshlrev_b32 v18, 4, v18")
        A(f"v_add_u32 v{240+n}, v17, v18")
        if n == 2:
            A(f"v_cndmask_b32 v{240+n}, v12, v{240+n}, vcc")
    A("s_cmp_ge_u32 s2, 216")
    A("s_cbranch_scc0 K2_W2OK")
    for n in range(3):
        A(f"v_mov_b32 v{240+n}, 0x7fffffff")
    A.label("K2_W2OK")
    A.stamp(1)
    A("s_waitcnt vmcnt(23)")
    A.stamp(2)
    A("s_cmp_ge_u32 s3, 3")
    A("s_cbranch_scc1 K2_NORED")
    for rt in range(1, 11):
        for r in range(0, 4, 2):
            A(f"v_pk_add_f32 v[{20+r}:{21+r}], v[{20+r}:{21+r}], v[{20+4*rt+r}:{21+4*rt+r}]")
    A("v_cvt_pk_bf16_f32 v64, v20, v21")
    A("v_cvt_pk_bf16_f32 v65, v22, v23")
    A("v_lshlrev_b32 v20, 16, v64")
    A("v_and_b32 v21, 0xffff0000, v64")
    A("v_lshlrev_b32 v22, 16, v65")
    A("v_and_b32 v23, 0xffff0000, v65")
    A("v_lshlrev_b32 v8, 4, v0")
    A("v_min_u32 v8, 2544, v8")
    A("v_cmp_gt_u32 vcc, 160, v0")
    A("s_and_saveexec_b64 s[54:55], vcc")
    A(f"ds_write_b128 v8, v[20:23] offset:{L_Z}")
    A("s_mov_b64 exec, s[54:55]")
    A("s_cmp_ge_u32 s3, 2")
    A("s_cbranch_scc1 K2_NORED")
    for rt in range(1, 11):
        for r in range(0, 4, 2):
            A(f"v_pk_add_f32 v[{180+r}:{181+r}], v[{180+r}:{181+r}], v[{180+4*rt+r}:{181+4*rt+r}]")
    A("v_cvt_pk_bf16_f32 v64, v180, v181")
    A("v_cvt_pk_bf16_f32 v65, v182, v183")
    A("v_lshlrev_b32 v20, 16, v64")
    A("v_and_b32 v21, 0xffff0000, v64")
    A("v_lshlrev_b32 v22, 16, v65")
    A("v_and_b32 v23, 0xffff0000, v65")
    A("v_lshlrev_b32 v8, 4, v0")
    A(f"ds_write_b128 v8, v[20:23] offset:{L_KV}")
    A.label("K2_NORED")
    A("s_waitcnt lgkmcnt(0)")
    A("s_barrier")
    A.stamp(3)
    A("v_lshrrev_b32 v4, 5, v0")
    A("v_and_b32 v5, 31, v0")
    A("v_mul_u32_u24 v6, 1280, v4")
    A("v_mul_u32_u24 v7, 40, v5")
    A("v_add_u32 v6, v6, v7")
    for i in range(5):
        A(f"ds_read_b64 v[{20+2*i}:{21+2*i}], v6 offset:{L_PQ + 8*i}")
    for i in range(5):
        A(f"ds_read_b64 v[{30+2*i}:{31+2*i}], v6 offset:{L_X + 8*i}")
    for i in range(5):
        A(f"ds_read_b64 v[{40+2*i}:{41+2*i}], v7 offset:{L_GW + 8*i}")
    A("v_mul_u32_u24 v13, 80, v5")
    for i in range(5):
        A(f"ds_read_b128 v[{60+4*i}:{63+4*i}], v13 offset:{L_Z + 16*i}")
    A("s_waitcnt lgkmcnt(5)")
    A("v_mov_b32 v84, 0")
    A("v_mov_b32 v85, 0")
    for i in range(10):
        A(f"v_lshlrev_b32 v12, 16, v{30+i}")
        A(f"v_lshlrev_b32 v14, 16, v{40+i}")
        A("v_fmac_f32 v84, v12, v14")
        A(f"v_and_b32 v12, 0xffff0000, v{30+i}")
        A(f"v_and_b32 v14, 0xffff0000, v{40+i}")
        A("v_fmac_f32 v85, v12, v14")
    A("v_add_f32 v84, v84, v85")
    for i in range(10):
        A(f"v_lshlrev_b32 v{204+2*i}, 16, v{20+i}")
        A(f"v_and_b32 v{205+2*i}, 0xffff0000, v{20+i}")
    A("s_waitcnt lgkmcnt(0)")
    A("v_mov_b32 v86, 0")
    A("v_mov_b32 v87, 0")
    for i in range(0, 20, 2):
        A(f"v_fmac_f32 v86, v{204+i}, v{60+i}")
        A(f"v_fmac_f32 v87, v{205+i}, v{61+i}")
    A("v_add_f32 v86, v86, v87")
    for m in (1, 2, 4, 8, 16):
        A(f"ds_swizzle_b32 v12, v84 offset:{(m << 10) | 0x1F}")
        A("s_waitcnt lgkmcnt(0)")
        A("v_add_f32 v84, v84, v12")
    A("v_cvt_pk_bf16_f32 v12, v84, v84")
    A("v_lshlrev_b32 v12, 16, v12")
    A(f"s_mov_b32 s50, {f32(-1.4426950408889634)}")
    A(f"s_mov_b32 s51, {f32(1e-6)}")
    A("v_mul_f32 v12, s50, v12")
    A("v_exp_f32 v12, v12")
    A("v_add_f32 v86, s51, v86")
    A("v_add_f32 v12, 1.0, v12")
    A("v_rcp_f32 v85, v12")
    A("v_rcp_f32 v86, v86")
    A("s_nop 0")
    A("v_mul_f32 v86, v86, v85")
    A("v_mov_b32 v87, v86")
    for i in range(0, 20, 2):
        A(f"v_pk_mul_f32 v[{204+i}:{205+i}], v[{204+i}:{205+i}], v[86:87]")
    for i in range(10):
        A(f"v_cvt_pk_bf16_f32 v{20+i}, v{204+2*i}, v{205+2*i}")
    for i in range(5):
        A(f"ds_write_b64 v6, v[{20+2*i}:{21+2*i}] offset:{L_OUT + 8*i}")
    A("s_lshl_b32 s6, s2, 3")
    A("v_add_u32 v4, s6, v4")
    A("v_sub_f32 v12, 1.0, v85")
    A("v_lshlrev_b32 v13, 2, v4")
    A("v_cmp_eq_u32 vcc, 0, v5")
    A("v_mov_b32 v14, 0x7fffffff")
    A("s_nop 1")
    A("v_cndmask_b32 v13, v14, v13, vcc")
    A(f"buffer_store_dword v12, v13, s[{SOM}:{SOM+3}], 0 offen")
    A("v_mul_u32_u24 v13, 80, v1")
    for i in range(5):
        A(f"ds_read_b128 v[{60+4*i}:{63+4*i}], v13 offset:{L_KV + 16*i}")
    A("s_waitcnt lgkmcnt(0)")
    A("s_barrier")
    A.stamp(4)
    A("s_lshl_b32 s6, s2, 3")
    for n in range(3):
        A(f"v_add_u32 v8, {256*n}, v0")
        A("v_mul_u32_u24 v14, 820, v8")
        A("v_lshrrev_b32 v14, 16, v14")
        A("v_mul_u32_u24 v15, 80, v14")
        A("v_sub_u32 v15, v8, v15")
        A("v_lshlrev_b32 v16, 4, v8")
        A("v_min_u32 v16, 10224, v16")
        A(f"ds_read_b128 v[{24+4*n}:{27+4*n}], v16 offset:{L_OUT}")
        A("v_add_u32 v14, s6, v14")
        A("v_and_b32 v17, 63, v14")
        A("v_lshrrev_b32 v18, 2, v17")
        A("v_sub_u32 v18, 0, v18")
        A("v_and_b32 v18, 3, v18")
        A("v_and_b32 v19, 3, v15")
        A("v_xor_b32 v18, v18, v19")
        A("v_lshlrev_b32 v18, 4, v18")
        A("v_lshlrev_b32 v17, 6, v17")
        A("v_add_u32 v17, v17, v18")
        A("v_lshrrev_b32 v14, 6, v14")
        A("v_mul_u32_u24 v14, 20, v14")
        A("v_lshrrev_b32 v15, 2, v15")
        A("v_add_u32 v14, v14, v15")
        A("v_lshlrev_b32 v14, 12, v14")
        A(f"v_add_u32 v{36+n}, v14, v17")
        if n == 2:
            A("v_cmp_gt_u32 vcc, 128, v0")
            A("v_mov_b32 v14, 0x7fffffff")
            A("s_nop 1")
            A(f"v_cndmask_b32 v{36+n}, v14, v{36+n}, vcc")
    A("s_waitcnt lgkmcnt(0)")
    for n in range(3):
        A(f"buffer_store_dwordx4 v[{24+4*n}:{27+4*n}], v{36+n}, s[{SPS}:{SPS+3}], 0 offen")
    A.stamp(5)
    for c in range(8):
        A(f"v_mov_b32 v{204+c}, 0")
    A("s_waitcnt vmcnt(7)")
    for e in range(20):
        for c2 in range(4):
            A(f"v_lshlrev_b32 v12, 16, v{100+4*e+c2}")
            A(f"v_and_b32 v14, 0xffff0000, v{100+4*e+c2}")
            A(f"v_fmac_f32 v{204+2*c2}, v{60+e}, v12")
            A(f"v_fmac_f32 v{205+2*c2}, v{60+e}, v14")
    for c2 in range(4):
        A(f"v_cvt_pk_bf16_f32 v{216+c2}, v{204+2*c2}, v{205+2*c2}")
    A("s_mul_i32 s6, s4, 20")
    A("v_add_u32 v13, s6, v1")
    A("v_lshrrev_b32 v12, 5, v13")
    A("s_mul_i32 s7, s5, 20")
    A("v_add_u32 v12, s7, v12")
    A("v_mul_u32_u24 v12, 5120, v12")
    A("v_and_b32 v13, 31, v13")
    A("v_lshrrev_b32 v15, 3, v13")
    A("v_and_b32 v15, 1, v15")
    A("v_lshlrev_b32 v15, 2, v15")
    A("v_xor_b32 v13, v13, v15")
    A("v_mul_u32_u24 v13, 160, v13")
    A("v_add_u32 v13, v13, v12")
    A("v_lshlrev_b32 v12, 4, v2")
    A("v_add_u32 v13, v13, v12")
    A("v_cmp_gt_u32 vcc, 200, v0")
    A("v_mov_b32 v14, 0x7fffffff")
    A("s_nop 1")
    A("v_cndmask_b32 v13, v14, v13, vcc")
    A(f"buffer_store_dwordx4 v[216:219], v13, s[{SM}:{SM+3}], 0 offen")
    A("s_waitcnt vmcnt(5)")
    for n in range(3):
        A(f"buffer_store_dwordx4 v[{228+4*n}:{231+4*n}], v{240+n}, s[84:87], 0 offen")
    A.label("K2_END")
    A.stamp(9)
    A.stamp_flush(1, 46, 47)
    A.label("K2_EXIT")
    A("s_endpgm")
    kd(A, name, 256 if STAMP else 244)

K3_SLOT = 9216
K3_LDS = 4 * 4 * K3_SLOT
def gen_k3(A):
    name = NAME + "_kernel"
    khead(A, name)
    SA, SB_, SO, SB2, SOM = 8, 12, 16, 20, 24
    S_RT, S_CT, S_W = 4, 5, 7
    S_AOFF, S_BOFF, S_LB = 28, 29, 30
    S_T0, S_T1, S_T2 = 31, 32, 33
    A.stamp(0)
    A("s_cmp_ge_u32 s2, 256")
    A("s_cbranch_scc1 K3_EXIT")
    A("s_load_dwordx4 s[36:39], s[0:1], 48")
    A("s_load_dwordx2 s[40:41], s[0:1], 72")
    A("s_load_dwordx2 s[42:43], s[0:1], 88")
    A("s_and_b32 s3, s2, 7")
    A("s_lshl_b32 s3, s3, 2")
    A(f"s_lshr_b32 s{S_T0}, s2, 3")
    A(f"s_and_b32 s{S_T1}, s{S_T0}, 3")
    A(f"s_add_u32 s{S_RT}, s3, s{S_T1}")
    A(f"s_lshr_b32 s{S_CT}, s2, 5")
    A("v_lshrrev_b32 v1, 6, v0")
    A("v_and_b32 v2, 63, v0")
    A("s_nop 0")
    A(f"v_readfirstlane_b32 s{S_W}, v1")
    A("v_lshrrev_b32 v3, 4, v2")
    A("v_and_b32 v4, 15, v2")
    A("s_waitcnt lgkmcnt(0)")
    srd(A, SO, 40, 41, 2048 * 640 * 2)
    srd(A, SB2, 38, 39, 1280)
    A(f"s_add_u32 s44, s42, {WS_OMG}")
    A("s_addc_u32 s45, s43, 0")
    srd(A, SOM, 44, 45, 8192)
    A(f"s_cmp_eq_u32 s{S_W}, 3")
    A("s_cbranch_scc1 K3_SET_ATT")
    A(f"s_add_u32 s44, s42, {WS_H}")
    A("s_addc_u32 s45, s43, 0")
    srd(A, SA, 44, 45, 2048 * 1728 * 2)
    A(f"s_add_u32 s44, s42, {WS_W2B}")
    A("s_addc_u32 s45, s43, 0")
    srd(A, SB_, 44, 45, 1728 * 640 * 2)
    A(f"s_mul_i32 s{S_AOFF}, s{S_RT}, 54")
    A(f"s_mul_i32 s{S_BOFF}, s{S_CT}, 54")
    A(f"s_mul_i32 s{S_T0}, s{S_W}, 18")
    A(f"s_add_u32 s{S_AOFF}, s{S_AOFF}, s{S_T0}")
    A(f"s_add_u32 s{S_BOFF}, s{S_BOFF}, s{S_T0}")
    A("s_branch K3_SET_DONE")
    A.label("K3_SET_ATT")
    A(f"s_add_u32 s44, s42, {WS_PQS}")
    A("s_addc_u32 s45, s43, 0")
    srd(A, SA, 44, 45, 2048 * 640 * 2)
    A(f"s_add_u32 s44, s42, {WS_M}")
    A("s_addc_u32 s45, s43, 0")
    srd(A, SB_, 44, 45, 640 * 640 * 2)
    A(f"s_mul_i32 s{S_AOFF}, s{S_RT}, 20")
    A(f"s_mul_i32 s{S_BOFF}, s{S_CT}, 20")
    A.label("K3_SET_DONE")
    A(f"s_lshl_b32 s{S_AOFF}, s{S_AOFF}, 12")
    A(f"s_mul_i32 s{S_BOFF}, s{S_BOFF}, 5120")
    A(f"s_mul_i32 s{S_LB}, s{S_W}, {4*K3_SLOT}")
    A(f"s_lshl_b32 s{S_T0}, s{S_RT}, 6")
    A(f"s_lshl_b32 s{S_T1}, s{S_W}, 4")
    A(f"s_add_u32 s{S_T0}, s{S_T0}, s{S_T1}")
    A(f"v_add_u32 v5, s{S_T0}, v4")
    A("v_lshlrev_b32 v1, 2, v5")
    A(f"buffer_load_dword v110, v1, s[{SOM}:{SOM+3}], 0 offen")
    A(f"s_mul_i32 s{S_T1}, s{S_CT}, 160")
    A("v_lshlrev_b32 v1, 3, v3")
    A(f"v_add_u32 v1, s{S_T1}, v1")
    for j in range(5):
        A(f"buffer_load_dwordx2 v[{112+2*j}:{113+2*j}], v1, s[{SB2}:{SB2+3}], 0 offen offset:{32*j}")
    A("v_mul_u32_u24 v111, 1280, v5")
    A("v_add_u32 v111, v111, v1")
    VAO, VBO = 6, 7
    A("v_lshlrev_b32 v6, 4, v2")
    A("v_add_u32 v7, 4096, v6")
    A("v_lshrrev_b32 v1, 2, v4")
    A("v_sub_u32 v18, 0, v1")
    A("v_and_b32 v18, 3, v18")
    A("v_xor_b32 v18, v18, v3")
    A("v_lshlrev_b32 v18, 4, v18")
    A("v_lshlrev_b32 v15, 6, v4")
    A("v_add_u32 v15, v15, v18")
    A(f"v_add_u32 v15, s{S_LB}, v15")
    A("v_lshlrev_b32 v18, 3, v3")
    A("v_add_u32 v18, v18, v1")
    A("v_and_b32 v19, 1, v3")
    A("v_lshlrev_b32 v19, 2, v19")
    A("v_add_u32 v20, v18, v19")
    A("v_xor_b32 v19, 4, v19")
    A("v_add_u32 v21, v18, v19")
    A("v_and_b32 v19, 3, v2")
    A("v_lshlrev_b32 v19, 3, v19")
    A(f"s_add_u32 s{S_T0}, s{S_LB}, 4096")
    A("v_mul_u32_u24 v16, 160, v20")
    A("v_add_u32 v16, v16, v19")
    A(f"v_add_u32 v16, s{S_T0}, v16")
    A("v_mul_u32_u24 v17, 160, v21")
    A("v_add_u32 v17, v17, v19")
    A(f"v_add_u32 v17, s{S_T0}, v17")
    FR = [22, 58]
    ACC = 128
    def acc(mt, j):
        return ACC + 4 * (mt * 5 + j)
    for i in range(80):
        A(f"v_mov_b32 v{ACC+i}, 0")

    S_N, S_T, S_DS, S_RS3 = 50, 51, 52, 53
    S_MB = 54
    def dma_instr(i):
        if i < 4:
            return f"buffer_load_dwordx4 v6, s[{SA}:{SA+3}], s{S_AOFF} offen offset:{1024*i} lds"
        if i < 8:
            return f"buffer_load_dwordx4 v6, s[{SB_}:{SB_+3}], s{S_BOFF} offen offset:{1024*(i-4)} lds"
        return f"buffer_load_dwordx4 v7, s[{SB_}:{SB_+3}], s{S_BOFF} offen lds"
    def m0_of(i):
        return S_M0 + (0 if i < 4 else (1 if i < 8 else 2))
    def adv():
        A(f"s_add_u32 s{S_AOFF}, s{S_AOFF}, 4096")
        A(f"s_add_u32 s{S_BOFF}, s{S_BOFF}, 5120")
        A(f"s_add_u32 s{S_DS}, s{S_DS}, {K3_SLOT}")
        A(f"s_cmp_eq_u32 s{S_DS}, {4*K3_SLOT}")
        A(f"s_cselect_b32 s{S_DS}, 0, s{S_DS}")
        A(f"s_add_u32 s{S_M0}, s{S_LB}, s{S_DS}")
        A(f"s_add_u32 s{S_M0+1}, s{S_M0}, 4096")
        A(f"s_add_u32 s{S_M0+2}, s{S_M0}, 8192")
    S_M0 = 88
    def reads(fs):
        out = []
        for mt in range(4):
            out.append(f"ds_read_b128 v[{fs+4*mt}:{fs+4*mt+3}], v15 offset:{mt*1024}")
        for j in range(5):
            for hh in range(2):
                r = fs + 16 + 4 * j + 2 * hh
                out.append(f"ds_read_b64_tr_b16 v[{r}:{r+1}], v{16+hh} offset:{32*j}")
        return out
    def mfmas(fs):
        mf = []
        for j in range(5):
            for mt in range(4):
                x = f"v[{fs+4*mt}:{fs+4*mt+3}]"
                w = f"v[{fs+16+4*j}:{fs+16+4*j+3}]"
                a = f"v[{acc(mt,j)}:{acc(mt,j)+3}]"
                mf.append(f"v_mfma_f32_16x16x32_bf16 {a}, {w}, {x}, {a}")
        return mf
    def adv_read():
        A(f"s_add_u32 s{S_RS3}, s{S_RS3}, 1")
        A(f"s_cmp_eq_u32 s{S_RS3}, 4")
        A(f"s_cselect_b32 s{S_RS3}, 0, s{S_RS3}")
        A(f"s_mov_b32 s{S_T0}, {K3_SLOT}")
        A(f"s_cselect_b32 s{S_T0}, {(-3*K3_SLOT) & 0xffffffff}, s{S_T0}")
        for r in (15, 16, 17):
            A(f"v_add_u32 v{r}, s{S_T0}, v{r}")
    A(f"s_cmp_eq_u32 s{S_W}, 3")
    A(f"s_cselect_b32 s{S_N}, 20, 18")
    A(f"s_mov_b32 s{S_DS}, {3*K3_SLOT}")
    A(f"s_sub_u32 s{S_AOFF}, s{S_AOFF}, 4096")
    A(f"s_sub_u32 s{S_BOFF}, s{S_BOFF}, 5120")
    A(f"s_mov_b32 s{S_RS3}, 0")
    A.stamp(1)
    for t in range(4):
        adv()
        for d in range(9):
            if d in (0, 4, 8):
                A(f"s_mov_b32 m0, s{m0_of(d)}")
                A("s_nop 0")
            A(dma_instr(d))
    A("s_waitcnt vmcnt(27)")
    A.stamp(2)
    for r in reads(FR[0]):
        A(r)
    A(f"s_mov_b32 s{S_T}, 0")
    A.label("K3_LOOP")
    for par in range(2):
        fs, fn = FR[par], FR[par ^ 1]
        A("s_waitcnt lgkmcnt(0)")
        A(f"s_add_u32 s{S_T1}, s{S_T}, 4")
        A(f"s_cmp_lt_u32 s{S_T1}, s{S_N}")
        A(f"s_cbranch_scc0 K3_TAIL{par}")
        adv()
        adv_read()
        A(f"s_waitcnt vmcnt({18 + (0)})")
        A(f"s_cmp_eq_u32 s{S_T}, s{S_T}")
        A(f"s_branch K3_BODY{par}")
        A.label(f"K3_TAIL{par}")
        A(f"s_add_u32 s{S_T1}, s{S_T}, 1")
        A(f"s_cmp_ge_u32 s{S_T1}, s{S_N}")
        A(f"s_cbranch_scc1 K3_FIN{par}")
        adv_read()
        A("s_waitcnt vmcnt(0)")
        A(f"s_cmp_lg_u32 s{S_T}, s{S_T}")
        A.label(f"K3_BODY{par}")
        rd = reads(fn)
        k = 0
        d = 0
        for i, m in enumerate(mfmas(fs)):
            A(m)
            if k < len(rd):
                A(rd[k]); k += 1
            if i % 2 == 1 and d < 9:
                A(f"s_cbranch_scc0 K3_SK{par}_{d}")
                if d in (0, 4, 8):
                    A(f"s_mov_b32 m0, s{m0_of(d)}")
                    A("s_nop 0")
                A(dma_instr(d))
                A.label(f"K3_SK{par}_{d}")
                d += 1
        A(f"s_add_u32 s{S_T}, s{S_T}, 1")
    A("s_branch K3_LOOP")
    A.label("K3_FIN0")
    for m in mfmas(FR[0]):
        A(m)
    A("s_branch K3_DONE")
    A.label("K3_FIN1")
    for m in mfmas(FR[1]):
        A(m)
    A.label("K3_DONE")
    A("s_nop 7")
    A("s_nop 7")
    A.stamp(7)
    A("s_barrier")
    A.stamp(8)
    A(f"s_mul_i32 s{S_T0}, s{S_W}, 20480")
    A("v_lshlrev_b32 v1, 4, v2")
    A(f"v_add_u32 v5, s{S_T0}, v1")
    for i in range(20):
        A(f"ds_write_b128 v5, v[{ACC+4*i}:{ACC+4*i+3}] offset:{1024*i}")
    A("s_waitcnt lgkmcnt(0)")
    A("s_barrier")
    A(f"s_mul_i32 s{S_T0}, s{S_W}, 5120")
    A(f"v_add_u32 v5, s{S_T0}, v1")
    A("v_add_u32 v6, 40960, v5")
    for j in range(5):
        A(f"ds_read_b128 v[{22+16*j}:{25+16*j}], v5 offset:{1024*j}")
        A(f"ds_read_b128 v[{26+16*j}:{29+16*j}], v5 offset:{20480+1024*j}")
        A(f"ds_read_b128 v[{30+16*j}:{33+16*j}], v6 offset:{1024*j}")
        A(f"ds_read_b128 v[{34+16*j}:{37+16*j}], v6 offset:{20480+1024*j}")
    A("s_waitcnt vmcnt(0) lgkmcnt(0)")
    for j in range(5):
        b = 22 + 16 * j
        for r in range(4):
            A(f"v_add_f32 v{b+r}, v{b+r}, v{b+4+r}")
        for r in range(4):
            A(f"v_add_f32 v{b+r}, v{b+r}, v{b+8+r}")
        A(f"v_lshlrev_b32 v{b+4}, 16, v{112+2*j}")
        A(f"v_and_b32 v{b+5}, 0xffff0000, v{112+2*j}")
        A(f"v_lshlrev_b32 v{b+6}, 16, v{113+2*j}")
        A(f"v_and_b32 v{b+7}, 0xffff0000, v{113+2*j}")
        for r in range(4):
            A(f"v_add_f32 v{b+r}, v{b+r}, v{b+4+r}")
        for r in range(4):
            A(f"v_fma_f32 v{b+r}, v{b+r}, v110, v{b+12+r}")
        A(f"v_cvt_pk_bf16_f32 v{b+8}, v{b}, v{b+1}")
        A(f"v_cvt_pk_bf16_f32 v{b+9}, v{b+2}, v{b+3}")
        A(f"buffer_store_dwordx2 v[{b+8}:{b+9}], v111, s[{SO}:{SO+3}], 0 offen offset:{32*j}")
    A.label("K3_END")
    A.stamp(9)
    A.stamp_flush(2, 42, 43)
    A.label("K3_EXIT")
    A("s_endpgm")
    kd(A, name, 256 if STAMP else 208)

def main():
    A = Asm()
    hdr = open(f"cdna_kernels/{NAME}.s.ref").read().splitlines()
    for l in hdr:
        if l.startswith("; @launch"):
            break
        A.raw(l)
    A.raw(f"; @launch kernel=k1_gemm_kernel grid=(256,1,1) block=(512,1,1) lds={K1_LDS}")
    A.raw(f"; @launch kernel=k2_small_kernel grid=(256,1,1) block=(256,1,1) lds={K2_LDS}")
    A.raw(f"; @launch kernel={NAME}_kernel grid=(256,1,1) block=(256,1,1) lds={K3_LDS}")
    A.raw('.amdgcn_target "amdgcn-amd-amdhsa--gfx950"')
    A.raw(".text")
    gen_k1(A)
    gen_k2(A)
    gen_k3(A)
    out = sys.argv[1] if len(sys.argv) > 1 else f"cdna_kernels/{NAME}.s"
    open(out, "w").write("\n".join(A.lines) + "\n")

main()
```
